```python
import torch

def _softmax(x, axis=-1):
    return torch.softmax(x, dim=axis)
def _gelu(x):
    return torch.nn.functional.gelu(x, approximate="tanh")
def _silu(x):
    return torch.nn.functional.silu(x)
def _sigmoid(x):
    return torch.sigmoid(x)
def _layernorm(x, axis=-1, eps=1e-5):
    m = x.mean(dim=axis, keepdim=True)
    v = x.var(dim=axis, keepdim=True, unbiased=False)
    return (x - m) / torch.sqrt(v + eps)
def _scatter_add(tgt, idx, src, axis=0):
    return tgt.clone().index_add_(axis, idx, src)
def _segment_sum(src, seg, n):
    out = torch.zeros((n,) + src.shape[1:], dtype=src.dtype)
    return out.index_add_(0, seg, src)
def _pad(x, pw):
    flat = tuple(v for pair in reversed(pw) for v in pair)
    return torch.nn.functional.pad(x, flat)

kernel_name = 'standalone__edge_featured_mpnn_mpnn__graph'

def setup_inputs():

    _w = (lambda a: (lambda t: t.to(torch.bfloat16) if t.is_floating_point() else t)(torch.as_tensor(a)))
    N, deg, D, De = 10000, 64, 64, max(16, 1)
    E = N * deg
    H = 2 * D
    return {
        "x": _w((lambda *s: torch.randn(*s, dtype=torch.bfloat16) * 0.05)(N, D)),
        "e_attr": _w((lambda *s: torch.randn(*s, dtype=torch.bfloat16) * 0.8)(E, De)),
        "src": _w((lambda lo, hi, *s: torch.randint(lo, hi, s))(0, N, E).to(torch.int64)),
        "dst": _w((lambda lo, hi, *s: torch.randint(lo, hi, s))(0, N, E).to(torch.int64)),
        "w1": _w((lambda *s: torch.randn(*s, dtype=torch.bfloat16) * 0.8)(2 * D + De, H) * (1.0 / (2 * D + De) ** 0.5)),
        "b1": _w((lambda *s: torch.randn(*s, dtype=torch.bfloat16) * 0.4)(H) * 0.01),
        "w2": _w((lambda *s: torch.randn(*s, dtype=torch.bfloat16) * 0.05)(H, D) * (1.0 / H ** 0.5)),
        "b2": _w((lambda *s: torch.randn(*s, dtype=torch.bfloat16) * 0.05)(D) * 0.01),
    }

def reference(x, e_attr, src, dst, w1, b1, w2, b2):
    N, D = x.shape
    h_src = x[src]
    h_dst = x[dst]
    m_in = torch.concatenate([h_src, h_dst, e_attr], axis=-1)
    h = _silu(m_in @ w1 + b1)
    msg = h @ w2 + b2
    return _segment_sum(msg, dst, N)
```

```python
import sys, struct

N, E = 10000, 640000
NCH, CH = 256, 2500
CHS = 10240
REC = 0
OFF = NCH * CHS
WF = OFF + NCH * 1024
WSZ = WF + 52 * 1024
STAMP = 4 << 20
LOG2E_NEG = struct.unpack("<I", struct.pack("<f", -1.4426950408889634))[0]
LN2_NEG = struct.unpack("<I", struct.pack("<f", -0.6931471805599453))[0]

RS = 528
QOFF = 0
AGG = 21760
SRCL = 43520
ELST = 59904
XS = 76288
ES = XS + 32768
W2L = ES + 16384
HIST = W2L + 16384
CNTT = HIST + 256
NPAD = CNTT + 256
MISC = NPAD + 256
LDS2 = MISC + 64
CAPP = 3328
DUMMY_S = 0xFFFF | ((40 * 33) << 16)
DUMMY_E = 0x00FFFFFF


class Asm:
    def __init__(self):
        self.L = []

    def __call__(self, s):
        for line in s.strip("\n").split("\n"):
            line = line.strip()
            if not line:
                continue
            self.L.append(line if line.endswith(":") or line.startswith(".") else "    " + line)

    def text(self):
        return "\n".join(self.L) + "\n"


def srd(a, d, lo, hi, size):
    a(f"s_mov_b32 s{d}, s{lo}\ns_and_b32 s{d+1}, s{hi}, 0xffff\ns_mov_b32 s{d+2}, {size}\ns_mov_b32 s{d+3}, 0x20000")


def scan64(a, v):
    for m in ("row_shr:1 row_mask:0xf", "row_shr:2 row_mask:0xf", "row_shr:4 row_mask:0xf", "row_shr:8 row_mask:0xf",
              "row_bcast:15 row_mask:0xa", "row_bcast:31 row_mask:0xc"):
        a(f"s_nop 1\nv_add_u32_dpp v{v}, v{v}, v{v} {m} bank_mask:0xf")


def stamp(a, opt, idx, sreg=96):
    if not opt.get("stamp"):
        return
    a(f"""
    s_memrealtime s[{sreg}:{sreg+1}]
    s_waitcnt lgkmcnt(0)
    v_mov_b32 v136, s{sreg}
    v_mov_b32 v137, s98
    buffer_store_dword v136, v137, s[92:95], 0 offen offset:{idx*4}
    """)


def stamp_setup(a, opt, wsreg, kidx, wavereg):
    if not opt.get("stamp"):
        return
    a(f"""
    s_add_u32 s92, s{wsreg}, {STAMP}
    s_addc_u32 s93, s{wsreg+1}, 0
    s_and_b32 s93, s93, 0xffff
    s_mov_b32 s94, {1<<20}
    s_mov_b32 s95, 0x20000
    s_add_u32 s98, s2, {kidx*256}
    s_lshl_b32 s98, s98, 4
    s_add_u32 s98, s98, s{wavereg}
    s_lshl_b32 s98, s98, 6
    """)


def gen_k1(a, opt):
    H1, ST1, SO1 = 0, 1024, 2048
    a(f"""
    s_cmp_ge_u32 s2, {NCH}
    s_cbranch_scc1 K1_end
    s_load_dwordx4 s[4:7], s[0:1], 16
    s_load_dwordx2 s[8:9], s[0:1], 80
    s_load_dwordx2 s[10:11], s[0:1], 32
    s_load_dwordx2 s[24:25], s[0:1], 48
    v_lshrrev_b32 v1, 6, v0
    v_lshlrev_b32 v2, 2, v0
    v_readfirstlane_b32 s3, v1
    v_mov_b32 v3, 0
    s_cmp_eq_u32 s3, 10
    s_cbranch_scc1 K1_prep
    s_cmp_ge_u32 s3, 4
    s_cbranch_scc1 K1_nozero
    ds_write_b32 v2, v3 offset:{H1}
K1_nozero:
    v_lshlrev_b32 v3, 4, v0
    s_mul_i32 s28, s2, {CH*4}
    s_mul_i32 s29, s2, {CHS}
    s_movk_i32 s30, 625
    v_cmp_gt_u32 vcc, s30, v0
    s_mov_b32 s31, 429497
    s_mov_b64 s[32:33], vcc
    s_waitcnt lgkmcnt(0)
    """)
    srd(a, 12, 4, 5, E * 4)
    srd(a, 16, 6, 7, E * 4)
    srd(a, 20, 8, 9, WSZ)
    stamp_setup(a, opt, 8, 0, 3)
    stamp(a, opt, 0)
    a(f"""
    s_mov_b64 exec, s[32:33]
    buffer_load_dwordx4 v[4:7], v3, s[16:19], s28 offen
    buffer_load_dwordx4 v[8:11], v3, s[12:15], s28 offen
    s_barrier
    v_mov_b32 v28, 1
    s_waitcnt vmcnt(1)
    """)
    for i in range(4):
        a(f"v_mul_u32_u24 v{12+i}, s31, v{4+i}")
    for i in range(4):
        a(f"v_lshrrev_b32 v{12+i}, 24, v{12+i}")
    for i in range(4):
        a(f"v_mad_u32_u24 v{16+i}, v{12+i}, s30, 15")
    for i in range(4):
        a(f"v_lshlrev_b32 v{12+i}, 2, v{12+i}")
    for i in range(4):
        a(f"ds_add_rtn_u32 v{20+i}, v{12+i}, v28 offset:{H1}")
    for i in range(4):
        a(f"v_lshrrev_b32 v{16+i}, 4, v{16+i}")
    for i in range(4):
        a(f"v_sub_u32 v{16+i}, v{4+i}, v{16+i}")
    for i in range(4):
        a(f"v_add_u32 v{24+i}, {i}, v2")
    for i in range(4):
        a(f"v_lshl_or_b32 v{16+i}, v{16+i}, 26, v{24+i}")
    a("s_waitcnt vmcnt(0)")
    for i in range(4):
        a(f"v_lshl_or_b32 v{16+i}, v{8+i}, 12, v{16+i}")
    stamp(a, opt, 1)
    a(f"""
    s_waitcnt lgkmcnt(0)
    s_barrier
    s_mov_b64 exec, -1
    v_and_b32 v29, 63, v0
    v_lshlrev_b32 v29, 4, v29
    ds_read_b128 v[4:7], v29 offset:{H1}
    s_waitcnt lgkmcnt(0)
    v_add_u32 v9, v4, v5
    v_add_u32 v10, v9, v6
    v_add_u32 v11, v10, v7
    v_mov_b32 v8, v11
    """)
    scan64(a, 8)
    a(f"""
    v_sub_u32 v24, v8, v11
    v_add_u32 v25, v24, v4
    v_add_u32 v26, v24, v9
    v_add_u32 v27, v24, v10
    ds_write_b128 v29, v[24:27] offset:{ST1}
    s_cmp_lg_u32 s3, 0
    s_cbranch_scc1 K1_nooff
    v_lshl_or_b32 v4, v4, 16, v24
    v_lshl_or_b32 v5, v5, 16, v25
    v_lshl_or_b32 v6, v6, 16, v26
    v_lshl_or_b32 v7, v7, 16, v27
    s_lshl_b32 s34, s2, 10
    s_add_u32 s34, s34, {OFF}
    buffer_store_dwordx4 v[4:7], v29, s[20:23], s34 offen
K1_nooff:
    s_mov_b64 exec, s[32:33]
    s_waitcnt lgkmcnt(0)
    """)
    for i in range(4):
        a(f"ds_read_b32 v{24+i}, v{12+i} offset:{ST1}")
    for i in range(4):
        a(f"s_waitcnt lgkmcnt({3-i})\nv_add_lshl_u32 v{24+i}, v{24+i}, v{20+i}, 2")
    for i in range(4):
        a(f"ds_write_b32 v{24+i}, v{16+i} offset:{SO1}")
    a(f"""
    s_waitcnt lgkmcnt(0)
    s_barrier
    ds_read_b128 v[4:7], v3 offset:{SO1}
    s_waitcnt lgkmcnt(0)
    buffer_store_dwordx4 v[4:7], v3, s[20:23], s29 offen
    """)
    stamp(a, opt, 2)
    a("""
    s_endpgm
K1_prep:
    s_cmp_ge_u32 s2, 52
    s_cbranch_scc1 K1_end
    v_and_b32 v1, 63, v0
    s_waitcnt lgkmcnt(0)
    """)
    srd(a, 20, 8, 9, WSZ)
    a(f"""
    s_cmp_ge_u32 s2, 36
    s_cbranch_scc1 K1_prep2
    """)
    srd(a, 12, 10, 11, 144 * 128 * 2)
    a(f"""
    s_lshr_b32 s28, s2, 2
    s_and_b32 s29, s2, 3
    s_lshl_b32 s30, s28, 12
    s_lshl_b32 s29, s29, 6
    s_add_u32 s30, s30, s29
    v_and_b32 v2, 31, v1
    v_lshrrev_b32 v3, 5, v1
    v_lshlrev_b32 v2, 1, v2
    v_lshl_add_u32 v2, v3, 11, v2
    s_and_b32 s28, s28, 12
    s_cmp_eq_u32 s28, 4
    s_cselect_b32 s31, 1.0, {hex(LOG2E_NEG)}
    """)
    for j in range(8):
        a(f"buffer_load_ushort v{4+j}, v2, s[12:15], s30 offen offset:{256*j}")
    a("""
    s_branch K1_prep3
K1_prep2:
    """)
    srd(a, 12, 24, 25, 128 * 64 * 2)
    a(f"""
    s_sub_u32 s28, s2, 36
    s_and_b32 s29, s28, 3
    s_lshr_b32 s28, s28, 2
    s_lshl_b32 s30, s29, 12
    s_lshl_b32 s28, s28, 5
    s_add_u32 s30, s30, s28
    v_and_b32 v2, 15, v1
    v_lshrrev_b32 v3, 4, v1
    v_lshlrev_b32 v2, 1, v2
    v_lshl_add_u32 v2, v3, 10, v2
    s_mov_b32 s31, 1.0
    """)
    for j in range(8):
        a(f"buffer_load_ushort v{4+j}, v2, s[12:15], s30 offen offset:{128*j}")
    a(f"""
K1_prep3:
    s_lshl_b32 s28, s2, 10
    s_add_u32 s28, s28, {WF}
    v_lshlrev_b32 v1, 4, v1
    s_barrier
    s_waitcnt vmcnt(0)
    """)
    for j in range(8):
        a(f"v_lshlrev_b32 v{4+j}, 16, v{4+j}")
    for j in range(8):
        a(f"v_mul_f32 v{4+j}, s31, v{4+j}")
    for j in range(4):
        a(f"v_cvt_pk_bf16_f32 v{12+j}, v{4+2*j}, v{5+2*j}")
    a("""
    buffer_store_dwordx4 v[12:15], v1, s[20:23], s28 offen
    s_barrier
    s_barrier
K1_end:
    s_endpgm
    """)


vLANE = 1
vXC0, vXC1, vEC, vCOL4 = 2, 3, 4, 5
vAX = 6
vAE = 10
vPS, vPE, vPN = 11, 12, 13
vAQ = 14
vAD = [16, 18]
vS = 20
vEO, vCHK = 24, 25
vBQ = 26
vT, vM0, vM1, vR = 28, 30, 32, 34
vA = 36
vD = [56, 72]
vE = 88
vQA, vQB, vQZ = 36, 56, 72
vREC = 88
vHA = 36
vRK = 52
vEID = 104
vT0 = 128
vB2 = 20
sW = 3
sX, sE, sWS, sO, sB1, sB2 = 4, 8, 12, 16, 20, 24
sK, sNB, sNN, sMODE, sR32, sGRP, sFIRST, sNT = 28, 29, 30, 31, 32, 33, 34, 35
sMX = 36
sME = 40
sC128, sCFC, sC33 = 42, 43, 44
sT = 45
sMK = 48
sU = 80


def W(kb, ct):
    b = (kb * 4 + ct) * 4
    return f"a[{b}:{b+3}]"


def vr(b, n):
    return f"v[{b}:{b+n-1}]"


def mfmas(dst, ct):
    L = []
    for kb in range(5):
        c = "0" if kb == 0 else vr(dst, 16)
        L.append(f"v_mfma_f32_32x32x16_bf16 {vr(dst,16)}, {vr(vA+4*kb,4)}, {W(kb,ct)}, {c}")
    L.append(f"v_mfma_f32_32x32x8_bf16 {vr(dst,16)}, {vr(vAQ,2)}, {vr(vBQ,2)}, {vr(dst,16)}")
    return L


def a_reads(epar):
    L = [f"ds_read_b128 {vr(vA+4*s,4)}, v{vAX+s}" for s in range(4)]
    L.append(f"ds_read_b128 {vr(vA+16,4)}, v{vAE} offset:{epar*1024}")
    return L


def x_offs():
    return [f"v_mad_u32_u16 v{vS+i}, v{vS+i}, s{sC128}, v{vXC1 if i & 1 else vXC0}" for i in range(4)]


def e_off():
    return f"v_lshl_add_u32 v{vEO}, v{vEO}, 5, v{vEC}"


def n_addr(r):
    return f"v_mad_u32_u16 v{r}, v{r}, 16, v{vCOL4} op_sel:[1,0,0,0]"


def dma_x(i):
    return (f"s_mov_b32 m0, s{sMX+i}", f"buffer_load_dwordx4 v{vS+i}, s[{sX}:{sX+3}], 0 offen lds")


def dma_e(par, opt):
    return (f"s_mov_b32 m0, s{sME+par}", f"buffer_load_dwordx4 v{vEO}, s[{sE}:{sE+3}], 0 offen {opt.get('eflag','')} lds")


def p_phase(cur, direct):
    L = []
    if direct:
        for i in range(8):
            e = vr(vE + 2 * i, 2)
            z = vr(cur + 2 * i, 2)
            L.append(f"v_pk_add_f32 {e}, {e}, 1.0 op_sel_hi:[1,0]")
            L.append(f"v_rcp_f32 v{vE+2*i}, v{vE+2*i}")
            L.append(f"v_rcp_f32 v{vE+2*i+1}, v{vE+2*i+1}")
            L.append("s_nop 0")
            if i == 0:
                L.append(f"v_pk_mul_f32 {vr(vT,2)}, {z}, {e}")
            else:
                L.append(f"v_pk_fma_f32 {vr(vT,2)}, {z}, {e}, {vr(vT,2)}")
        return L
    L.append(f"v_pk_add_f32 {vr(vM1,2)}, {vr(vE,2)}, 1.0 op_sel_hi:[1,0]")
    mc, mn = vM1, vM0
    for i in range(1, 8):
        e = vr(vE + 2 * i, 2)
        ts = vr(cur, 2) if i == 1 else vr(vT, 2)
        L.append(f"v_pk_fma_f32 {vr(vT,2)}, {ts}, {e}, {ts}")
        L.append(f"v_pk_fma_f32 {vr(mn,2)}, {vr(mc,2)}, {e}, {vr(mc,2)}")
        L.append(f"v_pk_fma_f32 {vr(vT,2)}, {vr(cur+2*i,2)}, {vr(mc,2)}, {vr(vT,2)}")
        mc, mn = mn, mc
    assert mc == vM0
    return L


def step(a, par, c, direct, opt):
    cur, nxt = vD[c & 1], vD[(c + 1) & 1]
    ctn, ctp = (c + 1) & 3, (c - 1) & 3
    aq = vAD[par] if c < 3 else vAD[par ^ 1]
    af = vAD[par] if c > 0 else vAD[par ^ 1]
    mf = mfmas(nxt, ctn)
    ex = [f"v_exp_f32 v{vE+i}, v{cur+i}" for i in range(16)]
    if c == 3:
        a("s_waitcnt lgkmcnt(0)")
    a(f"ds_read_b32 v{vBQ}, v{aq} offset:{QOFF+ctn*128}\nds_read_b32 v{vBQ+1}, v{aq+1} offset:{QOFF+ctn*128}")
    nds = 2
    dx = [dma_x(i) for i in range(4)] if c == 3 else None
    src = vT if direct else vR
    a(mf[0])
    if not direct:
        a(f"v_rcp_f32 v{vR}, v{vM0}\nv_rcp_f32 v{vR+1}, v{vM0+1}")
    a(ex[0])
    a(mf[1])
    a(ex[1])
    if not direct:
        a(f"v_mul_f32 v{vR}, v{vR}, v{vT}\nv_mul_f32 v{vR+1}, v{vR+1}, v{vT+1}")
    a(ex[2])
    a(f"ds_add_f32 v{af}, v{src} offset:{AGG+ctp*128}\nds_add_f32 v{af+1}, v{src+1} offset:{AGG+ctp*128}")
    if c == 0:
        o = par * 1024
        an = vAD[par ^ 1]
        a(f"""
        ds_read_b32 v{an}, v{vPN} offset:{SRCL+o+1024}
        ds_read_b32 v{an+1}, v{vPN} offset:{SRCL+o+1024+32}
        ds_read_b128 {vr(vS,4)}, v{vPS} offset:{SRCL+o+2048}
        ds_read_b32 v{vEO}, v{vPE} offset:{ELST+o+3072}
        """)
        nds += 4
    for g in range(3):
        a(mf[2 + g])
        for j in range(3):
            k = 3 * g + j
            if dx is not None and k < 4:
                a(dx[k][0])
            a(ex[3 + k])
            if dx is not None and k < 4:
                a(dx[k][1])
    a(f"s_waitcnt lgkmcnt({nds})")
    a(mf[5])
    if c == 2:
        a("s_waitcnt vmcnt(1)")
        for l in a_reads(par ^ 1):
            a(l)
    a(ex[12])
    a(ex[13])
    if c == 3:
        a(e_off())
        a(dma_e(par ^ 1, opt)[0])
    a(ex[14])
    if c == 3:
        a(dma_e(par ^ 1, opt)[1])
    a(ex[15])
    if not direct:
        a(f"v_max3_f32 v{vCHK}, v{vCHK}, v{vM0}, v{vM0+1}")
    if c == 0 and par == 1:
        for p in (vPS, vPE, vPN):
            a(f"v_add_u32 v{p}, 0x800, v{p}")
    if c == 1:
        a(n_addr(vAD[par ^ 1]))
    if c == 2:
        a(n_addr(vAD[par ^ 1] + 1))
        for l in x_offs():
            a(l)
    if c == 1:
        a(f"s_sub_u32 s{sNT}, s{sNT}, 1\ns_cmp_eq_u32 s{sNT}, 0")
    if opt.get("prio", 1):
        a("s_setprio 1")
    for l in p_phase(cur, direct):
        a(l)


def main_loop(a, direct, opt):
    tag = "D" if direct else "F"
    a(f".p2align 6\nK2_loop{tag}:")
    for par in range(2):
        for c in range(4):
            if opt.get("prio", 1):
                a("s_setprio 0")
            step(a, par, c, direct, opt)
        if par == 0:
            a(f"s_cbranch_scc1 K2_drain{tag}0")
        else:
            a(f"s_cbranch_scc0 K2_loop{tag}")
    for par in (1, 0):
        a(f"K2_drain{tag}{par}:")
        a("s_setprio 0")
        if direct:
            src = vT
        else:
            src = vR
            a(f"""
            v_rcp_f32 v{vR}, v{vM0}
            v_rcp_f32 v{vR+1}, v{vM0+1}
            v_max3_f32 v{vCHK}, v{vCHK}, v{vM0}, v{vM0+1}
            v_mul_f32 v{vR}, v{vR}, v{vT}
            v_mul_f32 v{vR+1}, v{vR+1}, v{vT+1}
            """)
        a(f"ds_add_f32 v{vAD[par]}, v{src} offset:{AGG+3*128}\nds_add_f32 v{vAD[par]+1}, v{src+1} offset:{AGG+3*128}")
        a("s_branch K2_loop_done")


def gen_k2(a, opt):
    a(f"""
    s_cmp_ge_u32 s2, 256
    s_cbranch_scc1 K2_end
    s_load_dwordx4 s[{sU}:{sU+3}], s[0:1], 0
    s_load_dwordx2 s[{sU+4}:{sU+5}], s[0:1], 80
    s_load_dwordx2 s[{sU+6}:{sU+7}], s[0:1], 40
    s_load_dwordx4 s[{sU+8}:{sU+11}], s[0:1], 56
    v_lshrrev_b32 v2, 6, v0
    v_and_b32 v{vLANE}, 63, v0
    v_readfirstlane_b32 s{sW}, v2
    s_and_b32 s{sK}, s2, 7
    s_lshl_b32 s{sK}, s{sK}, 5
    s_lshr_b32 s{sT}, s2, 3
    s_add_u32 s{sK}, s{sK}, s{sT}
    s_mul_i32 s{sNB}, s{sK}, 625
    s_add_u32 s{sNN}, s{sNB}, 640
    s_add_u32 s{sNB}, s{sNB}, 15
    s_lshr_b32 s{sNB}, s{sNB}, 4
    s_lshr_b32 s{sNN}, s{sNN}, 4
    s_sub_u32 s{sNN}, s{sNN}, s{sNB}
    s_mov_b32 s{sMODE}, {1 if opt.get('force_general') else 0}
    s_mov_b32 s{sR32}, 0
    s_mov_b32 s{sGRP}, 0
    s_mov_b32 s{sFIRST}, 1
    s_movk_i32 s{sC128}, 128
    s_movk_i32 s{sCFC}, 0xfc
    s_mov_b32 s{sC33}, {33 << 14}
    s_lshl_b32 s{sMX}, s{sW}, 12
    s_add_u32 s{sMX}, s{sMX}, {XS}
    s_add_u32 s{sMX+1}, s{sMX}, 1024
    s_add_u32 s{sMX+2}, s{sMX}, 2048
    s_add_u32 s{sMX+3}, s{sMX}, 3072
    s_lshl_b32 s{sME}, s{sW}, 11
    s_add_u32 s{sME}, s{sME}, {ES}
    s_add_u32 s{sME+1}, s{sME}, 1024
    s_waitcnt lgkmcnt(0)
    """)
    srd(a, sWS, sU + 4, sU + 5, WSZ)
    srd(a, sX, sU, sU + 1, N * 128)
    srd(a, sE, sU + 2, sU + 3, E * 32)
    srd(a, sB1, sU + 6, sU + 7, 256)
    srd(a, sB2, sU + 8, sU + 9, 128)
    srd(a, sO, sU + 10, sU + 11, N * 128)
    stamp_setup(a, opt, sU + 4, 1, sW)
    stamp(a, opt, 0)
    t0, t1, t2, t3, t4, t5 = range(vT0, vT0 + 6)
    vOF = 104
    a(f"""
K2_batch:
    v_lshrrev_b32 v{t0}, 2, v{vLANE}
    s_lshl_b32 s{sT}, s{sW}, 5
    v_add_u32 v{t0}, s{sT}, v{t0}
    s_lshl_b32 s{sT+1}, s{sK}, 2
    v_lshlrev_b32 v{t1}, 10, v{t0}
    s_add_u32 s{sT+1}, s{sT+1}, {OFF}
    s_add_u32 s{sT+2}, s{sT+1}, 16384
    buffer_load_dword v{vOF}, v{t1}, s[{sWS}:{sWS+3}], s{sT+1} offen
    buffer_load_dword v{vOF+1}, v{t1}, s[{sWS}:{sWS+3}], s{sT+2} offen
    v_lshlrev_b32 v{t2}, 4, v{vLANE}
    s_lshl_b32 s{sT}, s{sW}, 10
    s_add_u32 s{sU}, s{sT}, {WF}
    s_add_u32 s{sU+1}, s{sT}, {XS}
    """)
    for r in range(4):
        a(f"""
        s_add_u32 m0, s{sU+1}, {r*8192}
        s_add_u32 s{sU+2}, s{sU}, {r*8192}
        buffer_load_dwordx4 v{t2}, s[{sWS}:{sWS+3}], s{sU+2} offen lds
        """)
    a(f"""
    s_mov_b32 s{sU+3}, {W2L-4096}
    s_cmp_lt_u32 s{sW}, 4
    s_cmov_b32 s{sU+3}, {XS+32768}
    s_add_u32 m0, s{sU+3}, s{sT}
    s_add_u32 s{sU+2}, s{sU}, {32*1024}
    buffer_load_dwordx4 v{t2}, s[{sWS}:{sWS+3}], s{sU+2} offen lds
    s_add_u32 m0, s{sT}, {W2L+4096}
    s_add_u32 s{sU+2}, s{sU}, {40*1024}
    buffer_load_dwordx4 v{t2}, s[{sWS}:{sWS+3}], s{sU+2} offen lds
    s_and_b32 s{sU+3}, s{sT}, 3072
    s_add_u32 m0, s{sU+3}, {W2L+12288}
    s_add_u32 s{sU+2}, s{sU+3}, {WF+48*1024}
    buffer_load_dwordx4 v{t2}, s[{sWS}:{sWS+3}], s{sU+2} offen lds
    v_and_b32 v{t3}, 31, v{vLANE}
    v_lshrrev_b32 v{t4}, 5, v{vLANE}
    v_lshlrev_b32 v{vCOL4}, 2, v{t3}
    v_lshlrev_b32 v{t5}, 4, v{t4}
    v_lshl_add_u32 v{t5}, v{t3}, 7, v{t5}
    s_lshr_b32 s{sU+3}, s{sW}, 2
    s_lshl_b32 s{sU+3}, s{sU+3}, 5
    s_add_u32 s{sU+3}, s{sU+3}, s{sNB}
    s_lshl_b32 s{sU+3}, s{sU+3}, 7
    """)
    for s in range(4):
        a(f"buffer_load_dwordx4 {vr(vQA+4*s,4)}, v{t5}, s[{sX}:{sX+3}], s{sU+3} offen offset:{32*s}")
    a(f"""
    v_lshlrev_b32 v{t5}, 1, v{t3}
    s_and_b32 s{sU+4}, s{sW}, 3
    s_lshl_b32 s{sU+5}, s{sU+4}, 6
    buffer_load_ushort v{vR}, v{t5}, s[{sB1}:{sB1+3}], s{sU+5} offen
    v_lshlrev_b32 v{t5}, 7, v0
    s_lshr_b32 s{sU+5}, s2, 3
    s_mul_i32 s{sU+5}, s{sU+5}, {313*128}
    s_movk_i32 s{sU+6}, 313
    v_cmp_gt_u32 vcc, s{sU+6}, v0
    v_mov_b32 v{vR+1}, 0x40000000
    s_nop 0
    v_cndmask_b32 v{t5}, v{vR+1}, v{t5}, vcc
    buffer_load_dword v{vR+1}, v{t5}, s[{sX}:{sX+3}], s{sU+5} offen
    v_lshlrev_b32 v{t5}, 4, v0
    v_mov_b32 v{vD[0]}, {hex(DUMMY_S)}
    v_mov_b32 v{vD[0]+1}, {hex(DUMMY_S)}
    v_mov_b32 v{vD[0]+2}, {hex(DUMMY_S)}
    v_mov_b32 v{vD[0]+3}, {hex(DUMMY_S)}
    v_mov_b32 v{vD[0]+4}, {hex(DUMMY_E)}
    v_mov_b32 v{vD[0]+5}, {hex(DUMMY_E)}
    v_mov_b32 v{vD[0]+6}, {hex(DUMMY_E)}
    v_mov_b32 v{vD[0]+7}, {hex(DUMMY_E)}
    v_mov_b32 v{vD[0]+8}, 0
    v_mov_b32 v{vD[0]+9}, 0
    v_mov_b32 v{vD[0]+10}, 0
    v_mov_b32 v{vD[0]+11}, 0
    ds_write_b128 v{t5}, {vr(vD[0],4)} offset:{SRCL}
    ds_write_b128 v{t5}, {vr(vD[0],4)} offset:{SRCL+8192}
    v_add_u32 v{vS}, {ELST}, v{t5}
    ds_write_b128 v{vS}, {vr(vD[0]+4,4)}
    ds_write_b128 v{vS}, {vr(vD[0]+4,4)} offset:8192
    s_cmp_lg_u32 s{sW}, 0
    s_cbranch_scc1 K2_init2
    v_lshlrev_b32 v{vS+1}, 2, v{vLANE}
    v_add_u32 v{vS+1}, {HIST}, v{vS+1}
    ds_write_b32 v{vS+1}, v{vD[0]+8}
    v_lshlrev_b32 v{vS+2}, 3, v{vLANE}
    ds_write_b64 v{vS+2}, {vr(vD[0]+8,2)} offset:{QOFF+40*RS}
    s_cmp_eq_u32 s{sFIRST}, 0
    s_cbranch_scc1 K2_init2
    ds_write_b32 v{vS+1}, v{vD[0]+8} offset:{CNTT-HIST}
    ds_write_b32 v{vS+1}, v{vD[0]+8} offset:{MISC-HIST-192}
K2_init2:
    s_cmp_eq_u32 s{sFIRST}, 0
    s_cbranch_scc1 K2_init3
    ds_write_b128 v{t5}, {vr(vD[0]+8,4)} offset:{AGG}
    ds_write_b128 v{t5}, {vr(vD[0]+8,4)} offset:{AGG+8192}
    s_movk_i32 s{sU+6}, {(SRCL-AGG-16384)//16}
    v_cmp_gt_u32 vcc, s{sU+6}, v0
    s_and_saveexec_b64 s[{sU+8}:{sU+9}], vcc
    ds_write_b128 v{t5}, {vr(vD[0]+8,4)} offset:{AGG+16384}
    s_mov_b64 exec, -1
K2_init3:
    v_lshrrev_b32 v{vS}, 4, v{vLANE}
    v_and_b32 v{vS}, 1, v{vS}                     ; (l>>4)&1
    v_lshl_or_b32 v{vS+1}, v{t4}, 2, v{vS}        ; 4*(l>>5)+((l>>4)&1)
    v_and_b32 v{vS+2}, 7, v{vLANE}
    v_xor_b32 v{vXC0}, v{vS+1}, v{vS+2}
    v_lshlrev_b32 v{vXC0}, 4, v{vXC0}
    v_xor_b32 v{vXC1}, 32, v{vXC0}
    v_and_b32 v{vEC}, 1, v{vLANE}
    v_xor_b32 v{vEC}, v{vEC}, v{vS}
    v_lshlrev_b32 v{vEC}, 4, v{vEC}
    ; m = l&31 ; j = 16*((m>>2)&1) + 8*(m&1) + 2*(m>>3) + ((m>>1)&1)
    v_bfe_u32 v{vS}, v{t3}, 2, 1                  ; hm
    v_and_b32 v{vS+1}, 1, v{t3}                   ; xy
    v_lshrrev_b32 v{vS+2}, 3, v{t3}               ; m>>3
    v_bfe_u32 v{vS+3}, v{t3}, 1, 1
    v_lshl_add_u32 v{vS+2}, v{vS+2}, 1, v{vS+3}   ; p
    v_lshl_add_u32 v{vS+3}, v{vS}, 1, v{vS+1}     ; seg
    v_lshl_add_u32 v{vS+3}, v{vS+3}, 3, v{vS+2}   ; j
    v_xor_b32 v{vAE}, v{t4}, v{vS+1}
    v_lshlrev_b32 v{vAE}, 4, v{vAE}
    v_lshl_add_u32 v{vAE}, v{vS+3}, 5, v{vAE}
    v_add_u32 v{vAE}, s{sME}, v{vAE}
    v_and_b32 v{vEO}, 3, v{vS+3}
    v_lshrrev_b32 v{vS+3}, 2, v{vS+3}
    v_lshl_add_u32 v{vS+3}, v{vEO}, 3, v{vS+3}
    v_lshlrev_b32 v{vS+3}, 7, v{vS+3}
    v_add_u32 v{vS+3}, s{sMX}, v{vS+3}
    v_and_b32 v{vEO}, 7, v{t3}
    v_xor_b32 v{vEO}, v{vEO}, v{t4}
    v_lshl_add_u32 v{vAX}, v{vEO}, 4, v{vS+3}
    v_xor_b32 v{vAX+1}, 32, v{vAX}
    v_xor_b32 v{vAX+2}, 64, v{vAX}
    v_xor_b32 v{vAX+3}, 0x60, v{vAX}
    v_cmp_eq_u32 vcc, v{vS}, v{t4}
    v_mov_b32 v{vAQ}, 0x3f803f80
    s_nop 0
    v_cndmask_b32 v{vAQ}, 0, v{vAQ}, vcc
    v_cmp_eq_u32 vcc, 1, v{vS+1}
    s_nop 1
    v_cndmask_b32 v{vAQ+1}, 0, v{vAQ}, vcc
    v_cndmask_b32 v{vAQ}, v{vAQ}, 0, vcc
    s_lshl_b32 s{sU+6}, s{sW}, 7
    v_lshrrev_b32 v{vPS}, 3, v{vLANE}
    v_lshl_add_u32 v{vPS}, v{vPS}, 4, s{sU+6}
    v_lshrrev_b32 v{vPE}, 1, v{vLANE}
    v_lshl_add_u32 v{vPE}, v{vPE}, 2, s{sU+6}
    v_lshl_add_u32 v{vPN}, v{t4}, 6, s{sU+6}
    ; ---- records
    v_and_b32 v{t1}, 3, v{vLANE}
    v_lshlrev_b32 v{t1}, 2, v{t1}                 ; 4q
    v_add_u32 v{t1}, s{sR32}, v{t1}               ; 4q + r32
    s_movk_i32 s{sU+7}, {CH}
    v_mul_u32_u24 v{vOF+6}, s{sU+7}, v{t0}
    v_add_u32 v{vOF+7}, {16*CH}, v{vOF+6}
    s_movk_i32 s{sU+7}, {CHS//4}
    v_mad_u32_u24 v{vOF+4}, v{t0}, s{sU+7}, v{t1}
    v_add_u32 v{vOF+5}, {16*CHS//4}, v{vOF+4}
    s_waitcnt vmcnt(13)
    """)
    stamp(a, opt, 1)
    for i in range(2):
        a(f"""
        v_lshrrev_b32 v{vOF+2+i}, 16, v{vOF+i}
        v_and_b32 v{vOF+i}, 0xffff, v{vOF+i}
        v_add_lshl_u32 v{vOF+4+i}, v{vOF+4+i}, v{vOF+i}, 2
        """)
    a(f"""
    v_mov_b32 v{vOF}, v{vOF+2}
    v_mov_b32 v{vOF+1}, v{vOF+3}
    s_cmp_eq_u32 s{sMODE}, 0
    s_cbranch_scc1 K2_cnt_ok
    s_lshr_b32 s{sU+7}, s{sW}, 1
    s_cmp_eq_u32 s{sU+7}, s{sGRP}
    s_cbranch_scc1 K2_cnt_ok
    v_mov_b32 v{vOF+2}, 0
    v_mov_b32 v{vOF+3}, 0
K2_cnt_ok:
    v_sub_u32 v{vOF+2}, v{vOF+2}, v{t1}
    v_sub_u32 v{vOF+3}, v{vOF+3}, v{t1}
    v_mov_b32 v{t5}, 0x40000000
    """)
    def mk(sec, i, u):
        n = 8 * sec + 4 * i + u
        return f"s[{sMK+2*n}:{sMK+2*n+1}]"
    for sec in range(2):
        for i in range(2):
            a(f"v_cmp_lt_i32 {mk(sec,i,0)}, {16*sec}, v{vOF+2+i}")
    a("s_nop 1")
    for sec in range(2):
        for i in range(2):
            a(f"v_cndmask_b32 v{vS+2*sec+i}, v{t5}, v{vOF+4+i}, {mk(sec,i,0)}")
    for sec in range(2):
        for i in range(2):
            a(f"buffer_load_dwordx4 {vr(vREC+8*sec+4*i,4)}, v{vS+2*sec+i}, s[{sWS}:{sWS+3}], 0 offen offset:{64*sec}")
    for sec in range(2):
        for i in range(2):
            for u in range(1, 4):
                a(f"v_cmp_lt_i32 {mk(sec,i,u)}, {16*sec+u}, v{vOF+2+i}")
    a(f"""
    s_waitcnt vmcnt(4) lgkmcnt(0)
    s_barrier
    v_lshlrev_b32 v{t2}, 4, v{vLANE}
    s_lshl_b32 s{sU+5}, s{sU+4}, 10
    v_add_u32 v{t2}, {XS}, v{t2}
    v_add_u32 v{t5}, s{sU+5}, v{t2}
    """)
    for s in range(4):
        a(f"ds_read_b128 {vr(vQB+4*s,4)}, v{t5} offset:{(16+4*s)*1024}")
    for kb in range(5):
        for ct in range(4):
            f = 4 * kb + ct if kb < 4 else 32 + ct
            a(f"ds_read_b128 {W(kb,ct)}, v{t2} offset:{f*1024}")
    a(f"""
    v_max_u32 v{vOF}, v{vOF}, v{vOF+1}
    v_mov_b32 v{vOF+1}, {MISC}
    s_cmp_eq_u32 s{sMODE}, 0
    s_cbranch_scc1 K2_fastchk
    ds_max_u32 v{vOF+1}, v{vOF} offset:4
    s_branch K2_chkdone
K2_fastchk:
    v_cmp_lt_u32 vcc, 32, v{vOF}
    s_and_saveexec_b64 s[{sU+8}:{sU+9}], vcc
    s_cbranch_execz K2_chknone
    v_mov_b32 v{vOF+1}, {HIST+252}
    v_mov_b32 v{vOF}, 0x100000
    ds_max_u32 v{vOF+1}, v{vOF}
K2_chknone:
    s_mov_b64 exec, -1
K2_chkdone:
    v_lshlrev_b32 v{vR}, 16, v{vR}
    v_mul_f32 v{vR}, {hex(LOG2E_NEG)}, v{vR}
    s_mov_b32 s{sU+6}, {hex(LOG2E_NEG)}
    s_waitcnt lgkmcnt(0)
    """)
    for s in range(4):
        c = "0" if s == 0 else vr(vQZ, 16)
        a(f"v_mfma_f32_32x32x16_bf16 {vr(vQZ,16)}, {vr(vQA+4*s,4)}, {vr(vQB+4*s,4)}, {c}")
    a(f"""
    s_lshr_b32 s{sU+7}, s{sW}, 2
    s_mul_i32 s{sU+7}, s{sU+7}, {32*RS}
    s_lshl_b32 s{sU+8}, s{sU+4}, 7
    s_add_u32 s{sU+7}, s{sU+7}, s{sU+8}
    s_movk_i32 s{sU+8}, {4*RS}
    v_mad_u32_u24 v{vCHK}, v{t4}, s{sU+8}, v{vCOL4}
    v_add_u32 v{vCHK}, s{sU+7}, v{vCHK}
    s_nop 7
    s_nop 3
    """)

    def qvals(rng):
        for r in rng:
            a(f"v_fma_f32 v{vQZ+r}, v{vQZ+r}, s{sU+6}, v{vR}")
        for r in rng:
            a(f"v_cvt_pk_bf16_f32 v{vQB+r}, v{vQZ+r}, v{vQZ+r}")
        for r in rng:
            a(f"v_and_b32 v{vQB+r}, 0xffff0000, v{vQB+r}")
        for r in rng:
            a(f"v_sub_f32 v{vQA+r}, v{vQZ+r}, v{vQB+r}")
        for r in rng:
            a(f"v_cvt_pk_bf16_f32 v{vQB+r}, v{vQB+r}, v{vQA+r}")
        for r in rng:
            a(f"ds_write_b32 v{vCHK}, v{vQB+r} offset:{QOFF+(8*(r>>2)+(r&3))*RS}")
    qvals(range(4))
    a(f"s_cmp_ge_u32 s{sW}, 4\ns_cbranch_scc1 K2_qdone")
    qvals(range(4, 16))
    a(f"""
K2_qdone:
    v_mov_b32 v{t5}, 4
    v_mov_b32 v{t2}, {HIST}
    s_waitcnt vmcnt(0)
    """)
    stamp(a, opt, 2)

    def slot1(sec, i, u):
        n = 8 * sec + 4 * i + u
        a(f"""
        v_and_b32_sdwa v{vHA+n}, v{vREC+n}, s{sCFC} dst_sel:DWORD dst_unused:UNUSED_PAD src0_sel:BYTE_3 src1_sel:DWORD
        v_and_b32 v{vEID+8+n}, 0xfff, v{vREC+n}
        v_add_u32 v{t0}, v{vHA+n}, v{t2}
        v_bfe_u32 v{vREC+n}, v{vREC+n}, 12, 14
        ds_add_rtn_u32 v{vRK+n}, v{t0}, v{t5}
        v_add_u32 v{vEID+8+n}, v{vEID+8+n}, v{vOF+6+i}
        v_mad_u32_u24 v{vREC+n}, v{vHA+n}, s{sC33}, v{vREC+n}
        """)
    for i in range(2):
        for u in range(4):
            a(f"s_mov_b64 exec, {mk(0,i,u)}")
            slot1(0, i, u)
    for i in range(2):
        for u in range(4):
            a(f"s_mov_b64 exec, {mk(1,i,u)}\ns_cbranch_execz K2_s1skip{i}")
            slot1(1, i, u)
        a(f"K2_s1skip{i}:")
    a(f"""
    s_mov_b64 exec, -1
    v_lshlrev_b32 v{vS}, 2, v{vLANE}
    v_add_u32 v{vS}, {HIST}, v{vS}
    s_waitcnt lgkmcnt(0)
    s_barrier
    ds_read_b32 v{vS+1}, v{vS}
    s_waitcnt lgkmcnt(0)
    v_add_u32 v{vS+2}, 28, v{vS+1}
    v_and_b32 v{vS+2}, -32, v{vS+2}
    v_mov_b32 v{vS+3}, v{vS+2}
    """)
    scan64(a, vS + 3)
    a(f"""
    v_sub_u32 v{vEO}, v{vS+2}, v{vS+1}
    v_readlane_b32 s{sNT}, v{vS+3}, 63
    v_sub_u32 v{vS+3}, v{vS+3}, v{vS+2}
    v_cvt_f32_u32 v{vEO}, v{vEO}
    v_mul_f32 v{vEO}, -0.5, v{vEO}
    v_mul_f32 v{vEO}, 0.5, v{vEO}
    s_cmp_gt_u32 s{sNT}, {CAPP*4}
    s_cbranch_scc1 K2_togeneral
    ds_write_b32 v{vS}, v{vEO} offset:{NPAD-HIST}
    s_cmp_lg_u32 s{sW}, 0
    s_cbranch_scc1 K2_nocnt
    ds_add_u32 v{vS}, v{vS+1} offset:{CNTT-HIST}
K2_nocnt:
    s_add_u32 s{sNT}, s{sNT}, 124
    s_lshr_b32 s{sNT}, s{sNT}, 7
    s_add_u32 s{sNT}, s{sNT}, 7
    s_sub_u32 s{sNT}, s{sNT}, s{sW}
    s_lshr_b32 s{sNT}, s{sNT}, 3
    """)
    for n in range(8):
        a(f"ds_bpermute_b32 v{vHA+n}, v{vHA+n}, v{vS+3}")
    for n in range(8):
        a(f"s_waitcnt lgkmcnt({7-n})\nv_add_u32 v{vRK+n}, v{vRK+n}, v{vHA+n}")
    for n in range(8):
        a(f"s_mov_b64 exec, s[{sMK+2*n}:{sMK+2*n+1}]")
        a(f"ds_write2st64_b32 v{vRK+n}, v{vREC+n}, v{vEID+8+n} offset0:{SRCL//256} offset1:{ELST//256}")
    for i in range(2):
        a(f"s_cmp_eq_u64 {mk(1,i,0)}, 0\ns_cbranch_scc1 K2_s2skip{i}\ns_mov_b64 exec, -1")
        for u in range(4):
            n = 8 + 4 * i + u
            a(f"ds_bpermute_b32 v{vHA+n}, v{vHA+n}, v{vS+3}")
        a("s_waitcnt lgkmcnt(0)")
        for u in range(4):
            n = 8 + 4 * i + u
            a(f"""
            s_mov_b64 exec, {mk(1,i,u)}
            v_add_u32 v{vRK+n}, v{vRK+n}, v{vHA+n}
            ds_write2st64_b32 v{vRK+n}, v{vREC+n}, v{vEID+8+n} offset0:{SRCL//256} offset1:{ELST//256}
            """)
        a(f"K2_s2skip{i}:")
    a(f"""
    s_mov_b64 exec, -1
    s_waitcnt lgkmcnt(0)
    s_barrier
    """)
    stamp(a, opt, 3)
    a(f"""
    ds_read_b128 {vr(vS,4)}, v{vPS} offset:{SRCL}
    ds_read_b32 v{vEO}, v{vPE} offset:{ELST}
    ds_read_b32 v{vBQ}, v{vPE} offset:{ELST+1024}
    ds_read_b32 v{vAD[0]}, v{vPN} offset:{SRCL}
    ds_read_b32 v{vAD[0]+1}, v{vPN} offset:{SRCL+32}
    v_lshrrev_b32 v{t4}, 5, v{vLANE}
    s_lshr_b32 s{sU+7}, s{sW}, 2
    s_lshl_b32 s{sU+7}, s{sU+7}, 7
    s_add_u32 s{sU+7}, s{sU+7}, {NPAD}
    v_lshl_add_u32 v{t0}, v{t4}, 4, s{sU+7}
    s_waitcnt lgkmcnt(3)
    """)
    for l in x_offs():
        a(l)
    a(e_off())
    for i in range(4):
        a(dma_x(i)[0] + "\ns_nop 0\n" + dma_x(i)[1])
    a(dma_e(0, opt)[0] + "\ns_nop 0\n" + dma_e(0, opt)[1])
    a(f"""
    s_waitcnt lgkmcnt(2)
    v_lshl_add_u32 v{vEO}, v{vBQ}, 5, v{vEC}
    """)
    a(dma_e(1, opt)[0] + "\ns_nop 0\n" + dma_e(1, opt)[1])
    a(f"""
    ds_read_b128 {vr(vS,4)}, v{vPS} offset:{SRCL+1024}
    ds_read_b32 v{vEO}, v{vPE} offset:{ELST+2048}
    """)
    for g in range(4):
        a(f"ds_read_b128 {vr(vD[0]+4*g,4)}, v{t0} offset:{32*g}")

    def corr(rng):
        for r in rng:
            a(f"v_exp_f32 v{vE+r}, v{vQZ+r}")
        for r in rng:
            a(f"v_add_f32 v{vE+r}, 1.0, v{vE+r}")
        for r in rng:
            a(f"v_rcp_f32 v{vE+r}, v{vE+r}")
        a("s_waitcnt lgkmcnt(0)")
        for r in rng:
            a(f"v_mul_f32 v{vE+r}, v{vE+r}, v{vQZ+r}")
        for r in rng:
            a(f"v_mul_legacy_f32 v{vE+r}, v{vE+r}, v{vD[0]+r}")
        for r in rng:
            a(f"ds_add_f32 v{vCHK}, v{vE+r} offset:{AGG+(8*(r>>2)+(r&3))*RS}")
    corr(range(4))
    a(f"s_cmp_ge_u32 s{sW}, 4\ns_cbranch_scc1 K2_cdone")
    corr(range(4, 16))
    a(f"""
K2_cdone:
    {n_addr(vAD[0])}
    {n_addr(vAD[0]+1)}
    """)
    for l in x_offs():
        a(l)
    a(e_off())
    a(f"""
    v_add_u32 v{vAD[1]}, {40*RS}, v{vCOL4}
    v_add_u32 v{vAD[1]+1}, {40*RS}, v{vCOL4}
    v_mov_b32 v{vT}, 0
    v_mov_b32 v{vT+1}, 0
    v_mov_b32 v{vM0}, 1.0
    v_mov_b32 v{vM0+1}, 1.0
    s_waitcnt lgkmcnt(0)
    v_mov_b32 v{vCHK}, 1.0
    s_cmp_eq_u32 s{sNT}, 0
    s_cbranch_scc1 K2_loop_done
    ds_read_b32 v{vBQ}, v{vAD[0]} offset:{QOFF}
    ds_read_b32 v{vBQ+1}, v{vAD[0]+1} offset:{QOFF}
    s_waitcnt vmcnt(1)
    """)
    stamp(a, opt, 4)
    if opt.get("stamp"):
        a("s_waitcnt vmcnt(0)")
    for l in a_reads(0):
        a(l)
    a("s_waitcnt lgkmcnt(0)")
    mf = mfmas(vD[0], 0)
    for i in range(4):
        a(dma_x(i)[0] + "\n" + mf[i] + "\n" + dma_x(i)[1])
    a(dma_e(0, opt)[0] + "\n" + mf[4] + "\n" + dma_e(0, opt)[1])
    a(mf[5])
    a(f"""
    s_nop 7
    s_cmp_eq_u32 s{sMODE}, 0
    s_cbranch_scc0 K2_loopD
    """)
    main_loop(a, False, opt)
    main_loop(a, True, opt)
    a(f"""
K2_loop_done:
    s_mov_b32 s{sU}, 0x7b800000
    v_cmp_le_f32 vcc, s{sU}, v{vCHK}
    v_mov_b32 v{t0}, {MISC}
    v_mov_b32 v{t1}, 1
    s_and_saveexec_b64 s[{sU+8}:{sU+9}], vcc
    s_cbranch_execz K2_noflag
    ds_write_b32 v{t0}, v{t1}
K2_noflag:
    s_mov_b64 exec, -1
    v_and_b32 v{t2}, 15, v{vLANE}
    v_lshrrev_b32 v{t3}, 4, v{vLANE}
    s_and_b32 s{sU+1}, s{sW}, 1
    s_lshr_b32 s{sU+2}, s{sW}, 1
    s_lshl_b32 s{sU+3}, s{sU+1}, 6
    v_lshlrev_b32 v{t4}, 3, v{t3}
    buffer_load_dwordx2 {vr(vB2,2)}, v{t4}, s[{sB2}:{sB2+3}], s{sU+3} offen
    buffer_load_dwordx2 {vr(vB2+2,2)}, v{t4}, s[{sB2}:{sB2+3}], s{sU+3} offen offset:32
    s_lshl_b32 s{sU+3}, s{sU+1}, 13
    s_add_u32 s{sU+3}, s{sU+3}, {W2L}
    v_lshl_add_u32 v{t5}, v{vLANE}, 4, s{sU+3}
    """)
    for o in range(2):
        for s in range(4):
            a(f"ds_read_b128 {vr(vE-32+16*o+4*s,4)}, v{t5} offset:{(4*o+s)*1024}")
    stamp(a, opt, 5)
    a(f"""
    s_waitcnt vmcnt(0) lgkmcnt(0)
    s_barrier
    s_cmp_eq_u32 s{sMODE}, 0
    s_cbranch_scc1 K2_epi
    ds_read_b32 v{t1}, v{t0} offset:4
    s_add_u32 s{sGRP}, s{sGRP}, 1
    s_mov_b32 s{sFIRST}, 0
    s_waitcnt lgkmcnt(0)
    v_readfirstlane_b32 s{sU+4}, v{t1}
    s_cmp_lt_u32 s{sGRP}, 4
    s_cbranch_scc1 K2_rebatch
    s_mov_b32 s{sGRP}, 0
    s_add_u32 s{sR32}, s{sR32}, 32
    s_cmp_lt_u32 s{sR32}, s{sU+4}
    s_cbranch_scc1 K2_rebatch
K2_epi:
    s_cmp_ge_u32 s{sW}, 6
    s_cbranch_scc1 K2_epi_done
    s_lshl_b32 s{sU+4}, s{sU+2}, 4
    v_add_u32 v{t2}, s{sU+4}, v{t2}
    s_movk_i32 s{sU+5}, {RS}
    v_lshlrev_b32 v{t5}, 5, v{t3}
    v_mad_u32_u24 v{t5}, v{t2}, s{sU+5}, v{t5}
    """)
    vG = 24
    for s in range(4):
        a(f"ds_read_b128 {vr(vG+8*s,4)}, v{t5} offset:{AGG+128*s}\nds_read_b128 {vr(vG+8*s+4,4)}, v{t5} offset:{AGG+128*s+16}")
    a(f"""
    v_lshlrev_b32 v{t5}, 2, v{t2}
    v_add_u32 v{t5}, {CNTT}, v{t5}
    ds_read_b32 v{t1}, v{t5}
    v_lshlrev_b32 v{t4}, 3, v{t3}
    v_lshl_add_u32 v{t4}, v{t2}, 7, v{t4}
    s_lshl_b32 s{sU+5}, s{sNB}, 7
    s_lshl_b32 s{sU+6}, s{sU+1}, 6
    s_add_u32 s{sU+5}, s{sU+5}, s{sU+6}
    v_lshlrev_b32 v2, 16, v{vB2}
    v_and_b32 v3, 0xffff0000, v{vB2}
    v_lshlrev_b32 v4, 16, v{vB2+1}
    v_and_b32 v5, 0xffff0000, v{vB2+1}
    v_lshlrev_b32 v6, 16, v{vB2+2}
    v_and_b32 v7, 0xffff0000, v{vB2+2}
    v_lshlrev_b32 v8, 16, v{vB2+3}
    v_and_b32 v9, 0xffff0000, v{vB2+3}
    """)
    vP = 104
    for s in range(4):
        a(f"s_waitcnt lgkmcnt({7-2*s})")
        for j in range(4):
            a(f"v_cvt_pk_bf16_f32 v{vP+4*s+j}, v{vG+8*s+2*j}, v{vG+8*s+2*j+1}")
    a(f"""
    s_waitcnt lgkmcnt(0)
    v_cvt_f32_u32 v{t1}, v{t1}
    v_mul_f32 v{t1}, 0.5, v{t1}
    v_mul_f32 v{t1}, 0.5, v{t1}
    """)
    for s in range(4):
        for o in range(2):
            c = "0" if s == 0 else vr(12 + 4 * o, 4)
            a(f"v_mfma_f32_16x16x32_bf16 {vr(12+4*o,4)}, {vr(vE-32+16*o+4*s,4)}, {vr(vP+4*s,4)}, {c}")
    for j in range(8):
        a(f"v_mul_f32 v{2+j}, v{t1}, v{2+j}")
    a(f"""
    s_mov_b32 s{sU+6}, {hex(LN2_NEG)}
    v_cmp_gt_u32 vcc, s{sNN}, v{t2}
    s_nop 0
    s_and_saveexec_b64 s[{sU+8}:{sU+9}], vcc
    s_cbranch_execz K2_epi_done
    """)
    for j in range(8):
        a(f"v_fma_f32 v{2+j}, v{12+j}, s{sU+6}, v{2+j}")
    for j in range(4):
        a(f"v_cvt_pk_bf16_f32 v{24+j}, v{2+2*j}, v{3+2*j}")
    a(f"""
    buffer_store_dwordx2 v[24:25], v{t4}, s[{sO}:{sO+3}], s{sU+5} offen
    buffer_store_dwordx2 v[26:27], v{t4}, s[{sO}:{sO+3}], s{sU+5} offen offset:32
    v_sub_f32 v2, v2, v2
    """)
    for j in range(1, 8):
        a(f"v_fma_f32 v2, v{2+j}, 0, v2")
    a(f"""
    v_cmp_u_f32 vcc, v2, v2
    v_mov_b32 v{t1}, 1
    s_and_b64 exec, exec, vcc
    s_cbranch_execz K2_epi_done
    ds_write_b32 v{t0}, v{t1}
K2_epi_done:
    s_mov_b64 exec, -1
    """)
    stamp(a, opt, 6)
    a(f"""
    s_cmp_lg_u32 s{sMODE}, 0
    s_cbranch_scc1 K2_end
    s_waitcnt lgkmcnt(0)
    s_barrier
    ds_read_b32 v{t1}, v{t0}
    s_waitcnt lgkmcnt(0)
    v_readfirstlane_b32 s{sU+4}, v{t1}
    s_cmp_eq_u32 s{sU+4}, 0
    s_cbranch_scc1 K2_end
K2_togeneral:
    s_mov_b32 s{sMODE}, 1
    s_mov_b32 s{sR32}, 0
    s_mov_b32 s{sGRP}, 0
    s_mov_b32 s{sFIRST}, 1
K2_rebatch:
    s_waitcnt vmcnt(0) lgkmcnt(0)
    s_barrier
    s_branch K2_batch
K2_end:
    s_endpgm
    """)


HDR = """; Edge-featured MPNN: K1 buckets the edges by destination range, K2 sorts each bucket by
; @launch kernel=mpnn_bucket_kernel grid=(256,1,1) block=(704,1,1) lds=12288
; @launch kernel=mpnn_edge_kernel grid=(256,1,1) block=(512,1,1) lds={lds2}
.amdgcn_target "amdgcn-amd-amdhsa--gfx950"
.text
"""


def kd(name, vgpr, sgpr, accum):
    return f""".amdhsa_kernel {name}
  .amdhsa_next_free_vgpr {vgpr}
  .amdhsa_next_free_sgpr {sgpr}
  .amdhsa_accum_offset {accum}
  .amdhsa_group_segment_fixed_size 0
  .amdhsa_kernarg_size 88
  .amdhsa_user_sgpr_count 2
  .amdhsa_user_sgpr_kernarg_segment_ptr 1
  .amdhsa_system_sgpr_workgroup_id_x 1
.end_amdhsa_kernel
"""


def generate(opt=None):
    opt = opt or {}
    out = HDR.format(lds2=LDS2)
    for name, fn in (("mpnn_bucket_kernel", gen_k1), ("mpnn_edge_kernel", gen_k2)):
        a = Asm()
        fn(a, opt)
        out += f".globl {name}\n.p2align 8\n.type {name},@function\n{name}:\n" + a.text()
    out += '.section .rodata,"a"\n.p2align 6\n'
    st = opt.get("stamp")
    out += kd("mpnn_bucket_kernel", 144 if st else 32, 102 if st else 40, 144 if st else 32)
    out += ".p2align 6\n"
    out += kd("mpnn_edge_kernel", 224, 102, 144)
    return out


if __name__ == "__main__":
    opt = {}
    for arg in sys.argv[2:]:
        k, v = arg.split("=")
        opt[k] = int(v) if v.lstrip("-").isdigit() else v
    open(sys.argv[1], "w").write(generate(opt))
```

```python
import sys, struct

N, E = 10000, 640000
NCH, CH = 256, 2500
CHS = 10240
REC = 0
OFF = NCH * CHS
WF = OFF + NCH * 1024
WSZ = WF + 52 * 1024
STAMP = 4 << 20
LOG2E_NEG = struct.unpack("<I", struct.pack("<f", -1.4426950408889634))[0]
LN2_NEG = struct.unpack("<I", struct.pack("<f", -0.6931471805599453))[0]

RS = 528
RA = 1040
QOFF = 0
AGG = 21760
SRCL = 64512
ELST = SRCL + 16384
XS = ELST + 16384
ES = XS + 32768
W2L = ES + 16384
HIST = W2L + 16384
CNTT = HIST + 256
NPAD = CNTT + 256
MISC = NPAD + 256
LDS2 = MISC + 64
CAPP = 3328
DUMMY_S = 0xFFFF | (40 << 16)
DUMMY_E = 0x00FFFFFF


class Asm:
    def __init__(self):
        self.L = []

    def __call__(self, s):
        for line in s.strip("\n").split("\n"):
            line = line.strip()
            if not line:
                continue
            self.L.append(line if line.endswith(":") or line.startswith(".") else "    " + line)

    def text(self):
        return "\n".join(self.L) + "\n"


def srd(a, d, lo, hi, size):
    a(f"s_mov_b32 s{d}, s{lo}\ns_and_b32 s{d+1}, s{hi}, 0xffff\ns_mov_b32 s{d+2}, {size}\ns_mov_b32 s{d+3}, 0x20000")


def scan64(a, v):
    for m in ("row_shr:1 row_mask:0xf", "row_shr:2 row_mask:0xf", "row_shr:4 row_mask:0xf", "row_shr:8 row_mask:0xf",
              "row_bcast:15 row_mask:0xa", "row_bcast:31 row_mask:0xc"):
        a(f"s_nop 1\nv_add_u32_dpp v{v}, v{v}, v{v} {m} bank_mask:0xf")


def stamp(a, opt, idx, sreg=96):
    if not opt.get("stamp"):
        return
    a(f"""
    s_memrealtime s[{sreg}:{sreg+1}]
    s_waitcnt lgkmcnt(0)
    v_mov_b32 v136, s{sreg}
    v_mov_b32 v137, s98
    buffer_store_dword v136, v137, s[92:95], 0 offen offset:{idx*4}
    """)


def stamp_setup(a, opt, wsreg, kidx, wavereg):
    if not opt.get("stamp"):
        return
    a(f"""
    s_add_u32 s92, s{wsreg}, {STAMP}
    s_addc_u32 s93, s{wsreg+1}, 0
    s_and_b32 s93, s93, 0xffff
    s_mov_b32 s94, {1<<20}
    s_mov_b32 s95, 0x20000
    s_add_u32 s98, s2, {kidx*256}
    s_lshl_b32 s98, s98, 4
    s_add_u32 s98, s98, s{wavereg}
    s_lshl_b32 s98, s98, 6
    """)


def gen_k1(a, opt):
    H1, ST1, SO1 = 0, 1024, 2048
    a(f"""
    s_cmp_ge_u32 s2, {NCH}
    s_cbranch_scc1 K1_end
    s_load_dwordx4 s[4:7], s[0:1], 16
    s_load_dwordx2 s[8:9], s[0:1], 80
    s_load_dwordx2 s[10:11], s[0:1], 32
    s_load_dwordx2 s[24:25], s[0:1], 48
    v_lshrrev_b32 v1, 6, v0
    v_lshlrev_b32 v2, 2, v0
    v_readfirstlane_b32 s3, v1
    v_mov_b32 v3, 0
    s_cmp_eq_u32 s3, 10
    s_cbranch_scc1 K1_prep
    s_cmp_ge_u32 s3, 4
    s_cbranch_scc1 K1_nozero
    ds_write_b32 v2, v3 offset:{H1}
K1_nozero:
    v_lshlrev_b32 v3, 4, v0
    s_mul_i32 s28, s2, {CH*4}
    s_mul_i32 s29, s2, {CHS}
    s_movk_i32 s30, 625
    v_cmp_gt_u32 vcc, s30, v0
    s_mov_b32 s31, 429497
    s_mov_b64 s[32:33], vcc
    s_waitcnt lgkmcnt(0)
    """)
    srd(a, 12, 4, 5, E * 4)
    srd(a, 16, 6, 7, E * 4)
    srd(a, 20, 8, 9, WSZ)
    stamp_setup(a, opt, 8, 0, 3)
    stamp(a, opt, 0)
    a(f"""
    s_mov_b64 exec, s[32:33]
    buffer_load_dwordx4 v[4:7], v3, s[16:19], s28 offen
    buffer_load_dwordx4 v[8:11], v3, s[12:15], s28 offen
    s_barrier
    v_mov_b32 v28, 1
    s_waitcnt vmcnt(1)
    """)
    for i in range(4):
        a(f"v_mul_u32_u24 v{12+i}, s31, v{4+i}")
    for i in range(4):
        a(f"v_lshrrev_b32 v{12+i}, 24, v{12+i}")
    for i in range(4):
        a(f"v_mad_u32_u24 v{16+i}, v{12+i}, s30, 15")
    for i in range(4):
        a(f"v_lshlrev_b32 v{12+i}, 2, v{12+i}")
    for i in range(4):
        a(f"ds_add_rtn_u32 v{20+i}, v{12+i}, v28 offset:{H1}")
    for i in range(4):
        a(f"v_lshrrev_b32 v{16+i}, 4, v{16+i}")
    for i in range(4):
        a(f"v_sub_u32 v{16+i}, v{4+i}, v{16+i}")
    for i in range(4):
        a(f"v_add_u32 v{24+i}, {i}, v2")
    for i in range(4):
        a(f"v_lshl_or_b32 v{16+i}, v{16+i}, 26, v{24+i}")
    a("s_waitcnt vmcnt(0)")
    for i in range(4):
        a(f"v_lshl_or_b32 v{16+i}, v{8+i}, 12, v{16+i}")
    stamp(a, opt, 1)
    a(f"""
    s_waitcnt lgkmcnt(0)
    s_barrier
    s_mov_b64 exec, -1
    v_and_b32 v29, 63, v0
    v_lshlrev_b32 v29, 4, v29
    ds_read_b128 v[4:7], v29 offset:{H1}
    s_waitcnt lgkmcnt(0)
    v_add_u32 v9, v4, v5
    v_add_u32 v10, v9, v6
    v_add_u32 v11, v10, v7
    v_mov_b32 v8, v11
    """)
    scan64(a, 8)
    a(f"""
    v_sub_u32 v24, v8, v11
    v_add_u32 v25, v24, v4
    v_add_u32 v26, v24, v9
    v_add_u32 v27, v24, v10
    ds_write_b128 v29, v[24:27] offset:{ST1}
    s_cmp_lg_u32 s3, 0
    s_cbranch_scc1 K1_nooff
    v_lshl_or_b32 v4, v4, 16, v24
    v_lshl_or_b32 v5, v5, 16, v25
    v_lshl_or_b32 v6, v6, 16, v26
    v_lshl_or_b32 v7, v7, 16, v27
    s_lshl_b32 s34, s2, 10
    s_add_u32 s34, s34, {OFF}
    buffer_store_dwordx4 v[4:7], v29, s[20:23], s34 offen
K1_nooff:
    s_mov_b64 exec, s[32:33]
    s_waitcnt lgkmcnt(0)
    """)
    for i in range(4):
        a(f"ds_read_b32 v{24+i}, v{12+i} offset:{ST1}")
    for i in range(4):
        a(f"s_waitcnt lgkmcnt({3-i})\nv_add_lshl_u32 v{24+i}, v{24+i}, v{20+i}, 2")
    for i in range(4):
        a(f"ds_write_b32 v{24+i}, v{16+i} offset:{SO1}")
    a(f"""
    s_waitcnt lgkmcnt(0)
    s_barrier
    ds_read_b128 v[4:7], v3 offset:{SO1}
    s_waitcnt lgkmcnt(0)
    buffer_store_dwordx4 v[4:7], v3, s[20:23], s29 offen
    """)
    stamp(a, opt, 2)
    a("""
    s_endpgm
K1_prep:
    s_cmp_ge_u32 s2, 52
    s_cbranch_scc1 K1_end
    v_and_b32 v1, 63, v0
    s_waitcnt lgkmcnt(0)
    """)
    srd(a, 20, 8, 9, WSZ)
    a(f"""
    s_cmp_ge_u32 s2, 36
    s_cbranch_scc1 K1_prep2
    """)
    srd(a, 12, 10, 11, 144 * 128 * 2)
    a(f"""
    s_lshr_b32 s28, s2, 2
    s_and_b32 s29, s2, 3
    s_lshl_b32 s30, s28, 12
    s_lshl_b32 s29, s29, 6
    s_add_u32 s30, s30, s29
    v_and_b32 v2, 31, v1
    v_lshrrev_b32 v3, 5, v1
    v_lshlrev_b32 v2, 1, v2
    v_lshl_add_u32 v2, v3, 11, v2
    s_and_b32 s28, s28, 12
    s_cmp_eq_u32 s28, 4
    s_cselect_b32 s31, 1.0, {hex(LOG2E_NEG)}
    """)
    for j in range(8):
        a(f"buffer_load_ushort v{4+j}, v2, s[12:15], s30 offen offset:{256*j}")
    a("""
    s_branch K1_prep3
K1_prep2:
    """)
    srd(a, 12, 24, 25, 128 * 64 * 2)
    a(f"""
    s_sub_u32 s28, s2, 36
    s_and_b32 s29, s28, 3
    s_lshr_b32 s28, s28, 2
    s_lshl_b32 s30, s29, 12
    s_lshl_b32 s28, s28, 5
    s_add_u32 s30, s30, s28
    v_and_b32 v2, 15, v1
    v_lshrrev_b32 v3, 4, v1
    v_lshlrev_b32 v2, 1, v2
    v_lshl_add_u32 v2, v3, 10, v2
    s_mov_b32 s31, 1.0
    """)
    for j in range(8):
        a(f"buffer_load_ushort v{4+j}, v2, s[12:15], s30 offen offset:{128*j}")
    a(f"""
K1_prep3:
    s_lshl_b32 s28, s2, 10
    s_add_u32 s28, s28, {WF}
    v_lshlrev_b32 v1, 4, v1
    s_barrier
    s_waitcnt vmcnt(0)
    """)
    for j in range(8):
        a(f"v_lshlrev_b32 v{4+j}, 16, v{4+j}")
    for j in range(8):
        a(f"v_mul_f32 v{4+j}, s31, v{4+j}")
    for j in range(4):
        a(f"v_cvt_pk_bf16_f32 v{12+j}, v{4+2*j}, v{5+2*j}")
    a("""
    buffer_store_dwordx4 v[12:15], v1, s[20:23], s28 offen
    s_barrier
    s_barrier
K1_end:
    s_endpgm
    """)


vLANE = 1
vXC0, vXC1, vEC, vCOL4 = 2, 3, 4, 5
vAX = 6
vAE = 10
vPS, vPE, vPN = 11, 12, 13
vAQ = 14
vNQ, vNA = 16, 18
vNR = 104
vF = 106
vCOL8 = 110
vCA = 111
vS = 20
vEO, vCHK = 24, 25
vBQ = 26
vT, vM0, vM1, vR = 28, 30, 32, 34
vA = 36
vD = [56, 72]
vE = 88
vQA, vQB, vQZ = 36, 56, 72
vREC = 88
vHA = 36
vRK = 52
vEID = 104
vT0 = 128
vB2 = 20
sW = 3
sX, sE, sWS, sO, sB1, sB2 = 4, 8, 12, 16, 20, 24
sK, sNB, sNN, sMODE, sR32, sGRP, sFIRST, sNT = 28, 29, 30, 31, 32, 33, 34, 35
sMX = 36
sME = 40
sC128, sCFC, sC33 = 42, 43, 44
sCRS, sCRA = 99, 100
sT = 45
sMK = 48
sU = 80


def W(kb, ct):
    b = (kb * 4 + ct) * 4
    return f"a[{b}:{b+3}]"


def vr(b, n):
    return f"v[{b}:{b+n-1}]"


def mfmas(dst, ct):
    L = []
    for kb in range(5):
        c = "0" if kb == 0 else vr(dst, 16)
        L.append(f"v_mfma_f32_32x32x16_bf16 {vr(dst,16)}, {vr(vA+4*kb,4)}, {W(kb,ct)}, {c}")
    L.append(f"v_mfma_f32_32x32x8_bf16 {vr(dst,16)}, {vr(vAQ,2)}, {vr(vBQ,2)}, {vr(dst,16)}")
    return L


def a_reads(epar):
    L = [f"ds_read_b128 {vr(vA+4*s,4)}, v{vAX+s}" for s in range(4)]
    L.append(f"ds_read_b128 {vr(vA+16,4)}, v{vAE} offset:{epar*1024}")
    return L


def x_offs():
    return [f"v_mad_u32_u16 v{vS+i}, v{vS+i}, s{sC128}, v{vXC1 if i & 1 else vXC0}" for i in range(4)]


def e_off():
    return f"v_lshl_add_u32 v{vEO}, v{vEO}, 5, v{vEC}"


def q_addr(i):
    return f"v_mad_u32_u16 v{vNQ+i}, v{vNR+i}, s{sCRS}, v{vCOL4} op_sel:[1,0,0,0]"


def a_addr(i):
    return f"v_mad_u32_u16 v{vNA+i}, v{vNR+i}, s{sCRA}, v{vCOL8} op_sel:[1,0,0,0]"


def flush(ct):
    return [f"v_cvt_f64_f32 {vr(vF,2)}, v{vR}", f"v_cvt_f64_f32 {vr(vF+2,2)}, v{vR+1}",
            f"ds_add_f64 v{vNA}, {vr(vF,2)} offset:{AGG+ct*256}", f"ds_add_f64 v{vNA+1}, {vr(vF+2,2)} offset:{AGG+ct*256}"]


def dma_x(i):
    return (f"s_mov_b32 m0, s{sMX+i}", f"buffer_load_dwordx4 v{vS+i}, s[{sX}:{sX+3}], 0 offen lds")


def dma_e(par, opt):
    return (f"s_mov_b32 m0, s{sME+par}", f"buffer_load_dwordx4 v{vEO}, s[{sE}:{sE+3}], 0 offen {opt.get('eflag','')} lds")


def p_phase(cur, direct):
    L = []
    if direct:
        L.append(f"v_pk_mul_f32 {vr(vR,2)}, {vr(vT,2)}, 1.0 op_sel_hi:[1,0]")
    else:
        L.append(f"v_pk_mul_f32 {vr(vR,2)}, {vr(vR,2)}, {vr(vT,2)}")
    if direct:
        for i in range(8):
            e = vr(vE + 2 * i, 2)
            z = vr(cur + 2 * i, 2)
            L.append(f"v_pk_add_f32 {e}, {e}, 1.0 op_sel_hi:[1,0]")
            L.append(f"v_rcp_f32 v{vE+2*i}, v{vE+2*i}")
            L.append(f"v_rcp_f32 v{vE+2*i+1}, v{vE+2*i+1}")
            L.append("s_nop 0")
            if i == 0:
                L.append(f"v_pk_mul_f32 {vr(vT,2)}, {z}, {e}")
            else:
                L.append(f"v_pk_fma_f32 {vr(vT,2)}, {z}, {e}, {vr(vT,2)}")
        return L
    L.append(f"v_pk_add_f32 {vr(vM1,2)}, {vr(vE,2)}, 1.0 op_sel_hi:[1,0]")
    mc, mn = vM1, vM0
    for i in range(1, 8):
        e = vr(vE + 2 * i, 2)
        ts = vr(cur, 2) if i == 1 else vr(vT, 2)
        L.append(f"v_pk_fma_f32 {vr(vT,2)}, {ts}, {e}, {ts}")
        L.append(f"v_pk_fma_f32 {vr(mn,2)}, {vr(mc,2)}, {e}, {vr(mc,2)}")
        L.append(f"v_pk_fma_f32 {vr(vT,2)}, {vr(cur+2*i,2)}, {vr(mc,2)}, {vr(vT,2)}")
        mc, mn = mn, mc
    assert mc == vM0
    return L


def step(a, par, c, direct, opt):
    cur, nxt = vD[c & 1], vD[(c + 1) & 1]
    ctn = (c + 1) & 3
    mf = mfmas(nxt, ctn)
    ex = [f"v_exp_f32 v{vE+i}, v{cur+i}" for i in range(16)]
    fl = flush((c - 2) & 3)
    o = par * 1024
    if c == 3:
        a("s_waitcnt lgkmcnt(0)")
    a(f"ds_read_b32 v{vBQ}, v{vNQ} offset:{QOFF+ctn*128}\nds_read_b32 v{vBQ+1}, v{vNQ+1} offset:{QOFF+ctn*128}")
    nds = 2
    dx = [dma_x(i) for i in range(4)] if c == 3 else None
    a(mf[0])
    a(fl[0])
    a(fl[1])
    a(ex[0])
    a(fl[2])
    a(ex[1])
    a(fl[3])
    if c == 0:
        a(f"""
        ds_read_b128 {vr(vS,4)}, v{vPS} offset:{o+2048}
        ds_read_b32 v{vEO}, v{vPE} offset:{ELST-SRCL+o+3072}
        """)
        nds += 2
    a(mf[1])
    if not direct:
        a(f"v_rcp_f32 v{vR}, v{vM0}\nv_rcp_f32 v{vR+1}, v{vM0+1}")
    a(ex[2])
    for g in range(3):
        a(mf[2 + g])
        for j in range(3):
            k = 3 * g + j
            if dx is not None and k < 4:
                a(dx[k][0])
            a(ex[3 + k])
            if dx is not None and k < 4:
                a(dx[k][1])
    a(f"s_waitcnt lgkmcnt({nds})")
    a(mf[5])
    if c == 2:
        a("s_waitcnt vmcnt(1)")
        for l in a_reads(par ^ 1):
            a(l)
    a(ex[12])
    a(ex[13])
    if c == 3:
        a(e_off())
        a(dma_e(par ^ 1, opt)[0])
    a(ex[14])
    if c == 3:
        a(dma_e(par ^ 1, opt)[1])
    a(ex[15])
    if not direct:
        a(f"v_max3_f32 v{vCHK}, v{vCHK}, v{vM0}, v{vM0+1}")
    if c == 1:
        a(a_addr(0))
        a(a_addr(1))
        a(f"ds_read_b32 v{vNR}, v{vPN} offset:{o+1024}\nds_read_b32 v{vNR+1}, v{vPN} offset:{o+1024+32}")
        if par == 1:
            for p in (vPS, vPE, vPN):
                a(f"v_add_u32 v{p}, 0x800, v{p}")
        a(f"s_sub_u32 s{sNT}, s{sNT}, 1\ns_cmp_eq_u32 s{sNT}, 0")
    if c == 2:
        a(q_addr(0))
        a(q_addr(1))
        for l in x_offs():
            a(l)
    if opt.get("prio", 1):
        a("s_setprio 1")
    for l in p_phase(cur, direct):
        a(l)


def main_loop(a, direct, opt):
    tag = "D" if direct else "F"
    a(f".p2align 6\nK2_loop{tag}:")
    for par in range(2):
        for c in range(4):
            if opt.get("prio", 1):
                a("s_setprio 0")
            step(a, par, c, direct, opt)
        if par == 0:
            a(f"s_cbranch_scc1 K2_drain{tag}")
        else:
            a(f"s_cbranch_scc0 K2_loop{tag}")
    a(f"K2_drain{tag}:")
    a("s_setprio 0")
    for l in flush(2):
        a(l)
    if direct:
        a(f"v_mov_b32 v{vR}, v{vT}\nv_mov_b32 v{vR+1}, v{vT+1}")
    else:
        a(f"""
        v_rcp_f32 v{vR}, v{vM0}
        v_rcp_f32 v{vR+1}, v{vM0+1}
        v_max3_f32 v{vCHK}, v{vCHK}, v{vM0}, v{vM0+1}
        v_mul_f32 v{vR}, v{vR}, v{vT}
        v_mul_f32 v{vR+1}, v{vR+1}, v{vT+1}
        """)
    a("s_waitcnt lgkmcnt(0)")
    for l in flush(3):
        a(l)
    a("s_branch K2_loop_done")


def gen_k2(a, opt):
    a(f"""
    s_cmp_ge_u32 s2, 256
    s_cbranch_scc1 K2_end
    s_load_dwordx4 s[{sU}:{sU+3}], s[0:1], 0
    s_load_dwordx2 s[{sU+4}:{sU+5}], s[0:1], 80
    s_load_dwordx2 s[{sU+6}:{sU+7}], s[0:1], 40
    s_load_dwordx4 s[{sU+8}:{sU+11}], s[0:1], 56
    v_lshrrev_b32 v2, 6, v0
    v_and_b32 v{vLANE}, 63, v0
    v_readfirstlane_b32 s{sW}, v2
    s_and_b32 s{sK}, s2, 7
    s_lshl_b32 s{sK}, s{sK}, 5
    s_lshr_b32 s{sT}, s2, 3
    s_add_u32 s{sK}, s{sK}, s{sT}
    s_mul_i32 s{sNB}, s{sK}, 625
    s_add_u32 s{sNN}, s{sNB}, 640
    s_add_u32 s{sNB}, s{sNB}, 15
    s_lshr_b32 s{sNB}, s{sNB}, 4
    s_lshr_b32 s{sNN}, s{sNN}, 4
    s_sub_u32 s{sNN}, s{sNN}, s{sNB}
    s_mov_b32 s{sMODE}, {1 if opt.get('force_general') else 0}
    s_mov_b32 s{sR32}, 0
    s_mov_b32 s{sGRP}, 0
    s_mov_b32 s{sFIRST}, 1
    s_movk_i32 s{sC128}, 128
    s_movk_i32 s{sCFC}, 0xfc
    s_movk_i32 s{sC33}, {1 << 14}
    s_movk_i32 s{sCRS}, {RS}
    s_movk_i32 s{sCRA}, {RA}
    s_lshl_b32 s{sMX}, s{sW}, 12
    s_add_u32 s{sMX}, s{sMX}, {XS}
    s_add_u32 s{sMX+1}, s{sMX}, 1024
    s_add_u32 s{sMX+2}, s{sMX}, 2048
    s_add_u32 s{sMX+3}, s{sMX}, 3072
    s_lshl_b32 s{sME}, s{sW}, 11
    s_add_u32 s{sME}, s{sME}, {ES}
    s_add_u32 s{sME+1}, s{sME}, 1024
    s_waitcnt lgkmcnt(0)
    """)
    srd(a, sWS, sU + 4, sU + 5, WSZ)
    srd(a, sX, sU, sU + 1, N * 128)
    srd(a, sE, sU + 2, sU + 3, E * 32)
    srd(a, sB1, sU + 6, sU + 7, 256)
    srd(a, sB2, sU + 8, sU + 9, 128)
    srd(a, sO, sU + 10, sU + 11, N * 128)
    stamp_setup(a, opt, sU + 4, 1, sW)
    stamp(a, opt, 0)
    t0, t1, t2, t3, t4, t5 = range(vT0, vT0 + 6)
    vOF = 104
    a(f"""
K2_batch:
    v_lshrrev_b32 v{t0}, 2, v{vLANE}
    s_lshl_b32 s{sT}, s{sW}, 5
    v_add_u32 v{t0}, s{sT}, v{t0}
    s_lshl_b32 s{sT+1}, s{sK}, 2
    v_lshlrev_b32 v{t1}, 10, v{t0}
    s_add_u32 s{sT+1}, s{sT+1}, {OFF}
    s_add_u32 s{sT+2}, s{sT+1}, 16384
    buffer_load_dword v{vOF}, v{t1}, s[{sWS}:{sWS+3}], s{sT+1} offen
    buffer_load_dword v{vOF+1}, v{t1}, s[{sWS}:{sWS+3}], s{sT+2} offen
    v_lshlrev_b32 v{t2}, 4, v{vLANE}
    s_lshl_b32 s{sT}, s{sW}, 10
    s_add_u32 s{sU}, s{sT}, {WF}
    s_add_u32 s{sU+1}, s{sT}, {XS}
    """)
    for r in range(4):
        a(f"""
        s_add_u32 m0, s{sU+1}, {r*8192}
        s_add_u32 s{sU+2}, s{sU}, {r*8192}
        buffer_load_dwordx4 v{t2}, s[{sWS}:{sWS+3}], s{sU+2} offen lds
        """)
    a(f"""
    s_mov_b32 s{sU+3}, {W2L-4096}
    s_cmp_lt_u32 s{sW}, 4
    s_cmov_b32 s{sU+3}, {XS+32768}
    s_add_u32 m0, s{sU+3}, s{sT}
    s_add_u32 s{sU+2}, s{sU}, {32*1024}
    buffer_load_dwordx4 v{t2}, s[{sWS}:{sWS+3}], s{sU+2} offen lds
    s_add_u32 m0, s{sT}, {W2L+4096}
    s_add_u32 s{sU+2}, s{sU}, {40*1024}
    buffer_load_dwordx4 v{t2}, s[{sWS}:{sWS+3}], s{sU+2} offen lds
    s_and_b32 s{sU+3}, s{sT}, 3072
    s_add_u32 m0, s{sU+3}, {W2L+12288}
    s_add_u32 s{sU+2}, s{sU+3}, {WF+48*1024}
    buffer_load_dwordx4 v{t2}, s[{sWS}:{sWS+3}], s{sU+2} offen lds
    v_and_b32 v{t3}, 31, v{vLANE}
    v_lshrrev_b32 v{t4}, 5, v{vLANE}
    v_lshlrev_b32 v{vCOL4}, 2, v{t3}
    v_lshlrev_b32 v{t5}, 4, v{t4}
    v_lshl_add_u32 v{t5}, v{t3}, 7, v{t5}
    s_lshr_b32 s{sU+3}, s{sW}, 2
    s_lshl_b32 s{sU+3}, s{sU+3}, 5
    s_add_u32 s{sU+3}, s{sU+3}, s{sNB}
    s_lshl_b32 s{sU+3}, s{sU+3}, 7
    """)
    for s in range(4):
        a(f"buffer_load_dwordx4 {vr(vQA+4*s,4)}, v{t5}, s[{sX}:{sX+3}], s{sU+3} offen offset:{32*s}")
    a(f"""
    v_lshlrev_b32 v{t5}, 1, v{t3}
    s_and_b32 s{sU+4}, s{sW}, 3
    s_lshl_b32 s{sU+5}, s{sU+4}, 6
    buffer_load_ushort v{vR}, v{t5}, s[{sB1}:{sB1+3}], s{sU+5} offen
    v_lshlrev_b32 v{t5}, 7, v0
    s_lshr_b32 s{sU+5}, s2, 3
    s_mul_i32 s{sU+5}, s{sU+5}, {313*128}
    s_movk_i32 s{sU+6}, 313
    v_cmp_gt_u32 vcc, s{sU+6}, v0
    v_mov_b32 v{vR+1}, 0x40000000
    s_nop 0
    v_cndmask_b32 v{t5}, v{vR+1}, v{t5}, vcc
    buffer_load_dword v{vR+1}, v{t5}, s[{sX}:{sX+3}], s{sU+5} offen
    v_lshlrev_b32 v{t5}, 4, v0
    v_mov_b32 v{vD[0]}, {hex(DUMMY_S)}
    v_mov_b32 v{vD[0]+1}, {hex(DUMMY_S)}
    v_mov_b32 v{vD[0]+2}, {hex(DUMMY_S)}
    v_mov_b32 v{vD[0]+3}, {hex(DUMMY_S)}
    v_mov_b32 v{vD[0]+4}, {hex(DUMMY_E)}
    v_mov_b32 v{vD[0]+5}, {hex(DUMMY_E)}
    v_mov_b32 v{vD[0]+6}, {hex(DUMMY_E)}
    v_mov_b32 v{vD[0]+7}, {hex(DUMMY_E)}
    v_mov_b32 v{vD[0]+8}, 0
    v_mov_b32 v{vD[0]+9}, 0
    v_mov_b32 v{vD[0]+10}, 0
    v_mov_b32 v{vD[0]+11}, 0
    v_add_u32 v{vS}, {SRCL}, v{t5}
    ds_write_b128 v{vS}, {vr(vD[0],4)}
    ds_write_b128 v{vS}, {vr(vD[0],4)} offset:8192
    ds_write_b128 v{vS}, {vr(vD[0]+4,4)} offset:16384
    ds_write_b128 v{vS}, {vr(vD[0]+4,4)} offset:24576
    s_cmp_lg_u32 s{sW}, 0
    s_cbranch_scc1 K2_init2
    v_lshlrev_b32 v{vS+1}, 2, v{vLANE}
    v_add_u32 v{vS+1}, {HIST}, v{vS+1}
    ds_write_b32 v{vS+1}, v{vD[0]+8}
    v_lshlrev_b32 v{vS+2}, 3, v{vLANE}
    ds_write_b64 v{vS+2}, {vr(vD[0]+8,2)} offset:{QOFF+40*RS}
    s_cmp_eq_u32 s{sFIRST}, 0
    s_cbranch_scc1 K2_init2
    ds_write_b32 v{vS+1}, v{vD[0]+8} offset:{CNTT-HIST}
    ds_write_b32 v{vS+1}, v{vD[0]+8} offset:{MISC-HIST-192}
K2_init2:
    s_cmp_eq_u32 s{sFIRST}, 0
    s_cbranch_scc1 K2_init3
    ds_write_b128 v{t5}, {vr(vD[0]+8,4)} offset:{AGG}
    ds_write_b128 v{t5}, {vr(vD[0]+8,4)} offset:{AGG+8192}
    ds_write_b128 v{t5}, {vr(vD[0]+8,4)} offset:{AGG+16384}
    ds_write_b128 v{t5}, {vr(vD[0]+8,4)} offset:{AGG+24576}
    ds_write_b128 v{t5}, {vr(vD[0]+8,4)} offset:{AGG+32768}
    s_movk_i32 s{sU+6}, {(SRCL-AGG-40960)//16}
    v_cmp_gt_u32 vcc, s{sU+6}, v0
    s_and_saveexec_b64 s[{sU+8}:{sU+9}], vcc
    ds_write_b128 v{t5}, {vr(vD[0]+8,4)} offset:{AGG+40960}
    s_mov_b64 exec, -1
K2_init3:
    v_lshrrev_b32 v{vS}, 4, v{vLANE}
    v_and_b32 v{vS}, 1, v{vS}                     ; (l>>4)&1
    v_lshl_or_b32 v{vS+1}, v{t4}, 2, v{vS}        ; 4*(l>>5)+((l>>4)&1)
    v_and_b32 v{vS+2}, 7, v{vLANE}
    v_xor_b32 v{vXC0}, v{vS+1}, v{vS+2}
    v_lshlrev_b32 v{vXC0}, 4, v{vXC0}
    v_xor_b32 v{vXC1}, 32, v{vXC0}
    v_and_b32 v{vEC}, 1, v{vLANE}
    v_xor_b32 v{vEC}, v{vEC}, v{vS}
    v_lshlrev_b32 v{vEC}, 4, v{vEC}
    ; m = l&31 ; j = 16*((m>>2)&1) + 8*(m&1) + 2*(m>>3) + ((m>>1)&1)
    v_bfe_u32 v{vS}, v{t3}, 2, 1                  ; hm
    v_and_b32 v{vS+1}, 1, v{t3}                   ; xy
    v_lshrrev_b32 v{vS+2}, 3, v{t3}               ; m>>3
    v_bfe_u32 v{vS+3}, v{t3}, 1, 1
    v_lshl_add_u32 v{vS+2}, v{vS+2}, 1, v{vS+3}   ; p
    v_lshl_add_u32 v{vS+3}, v{vS}, 1, v{vS+1}     ; seg
    v_lshl_add_u32 v{vS+3}, v{vS+3}, 3, v{vS+2}   ; j
    v_xor_b32 v{vAE}, v{t4}, v{vS+1}
    v_lshlrev_b32 v{vAE}, 4, v{vAE}
    v_lshl_add_u32 v{vAE}, v{vS+3}, 5, v{vAE}
    v_add_u32 v{vAE}, s{sME}, v{vAE}
    v_and_b32 v{vEO}, 3, v{vS+3}
    v_lshrrev_b32 v{vS+3}, 2, v{vS+3}
    v_lshl_add_u32 v{vS+3}, v{vEO}, 3, v{vS+3}
    v_lshlrev_b32 v{vS+3}, 7, v{vS+3}
    v_add_u32 v{vS+3}, s{sMX}, v{vS+3}
    v_and_b32 v{vEO}, 7, v{t3}
    v_xor_b32 v{vEO}, v{vEO}, v{t4}
    v_lshl_add_u32 v{vAX}, v{vEO}, 4, v{vS+3}
    v_xor_b32 v{vAX+1}, 32, v{vAX}
    v_xor_b32 v{vAX+2}, 64, v{vAX}
    v_xor_b32 v{vAX+3}, 0x60, v{vAX}
    v_cmp_eq_u32 vcc, v{vS}, v{t4}
    v_mov_b32 v{vAQ}, 0x3f803f80
    s_nop 0
    v_cndmask_b32 v{vAQ}, 0, v{vAQ}, vcc
    v_cmp_eq_u32 vcc, 1, v{vS+1}
    s_nop 1
    v_cndmask_b32 v{vAQ+1}, 0, v{vAQ}, vcc
    v_cndmask_b32 v{vAQ}, v{vAQ}, 0, vcc
    s_lshl_b32 s{sU+6}, s{sW}, 7
    s_add_u32 s{sU+6}, s{sU+6}, {SRCL}
    v_lshrrev_b32 v{vPS}, 3, v{vLANE}
    v_lshl_add_u32 v{vPS}, v{vPS}, 4, s{sU+6}
    v_lshrrev_b32 v{vPE}, 1, v{vLANE}
    v_lshl_add_u32 v{vPE}, v{vPE}, 2, s{sU+6}
    v_lshl_add_u32 v{vPN}, v{t4}, 6, s{sU+6}
    ; ---- records
    v_and_b32 v{t1}, 3, v{vLANE}
    v_lshlrev_b32 v{t1}, 2, v{t1}                 ; 4q
    v_add_u32 v{t1}, s{sR32}, v{t1}               ; 4q + r32
    s_movk_i32 s{sU+7}, {CH}
    v_mul_u32_u24 v{vOF+6}, s{sU+7}, v{t0}
    v_add_u32 v{vOF+7}, {16*CH}, v{vOF+6}
    s_movk_i32 s{sU+7}, {CHS//4}
    v_mad_u32_u24 v{vOF+4}, v{t0}, s{sU+7}, v{t1}
    v_add_u32 v{vOF+5}, {16*CHS//4}, v{vOF+4}
    s_waitcnt vmcnt(13)
    """)
    stamp(a, opt, 1)
    for i in range(2):
        a(f"""
        v_lshrrev_b32 v{vOF+2+i}, 16, v{vOF+i}
        v_and_b32 v{vOF+i}, 0xffff, v{vOF+i}
        v_add_lshl_u32 v{vOF+4+i}, v{vOF+4+i}, v{vOF+i}, 2
        """)
    a(f"""
    v_mov_b32 v{vOF}, v{vOF+2}
    v_mov_b32 v{vOF+1}, v{vOF+3}
    s_cmp_eq_u32 s{sMODE}, 0
    s_cbranch_scc1 K2_cnt_ok
    s_lshr_b32 s{sU+7}, s{sW}, 1
    s_cmp_eq_u32 s{sU+7}, s{sGRP}
    s_cbranch_scc1 K2_cnt_ok
    v_mov_b32 v{vOF+2}, 0
    v_mov_b32 v{vOF+3}, 0
K2_cnt_ok:
    v_sub_u32 v{vOF+2}, v{vOF+2}, v{t1}
    v_sub_u32 v{vOF+3}, v{vOF+3}, v{t1}
    v_mov_b32 v{t5}, 0x40000000
    """)
    def mk(sec, i, u):
        n = 8 * sec + 4 * i + u
        return f"s[{sMK+2*n}:{sMK+2*n+1}]"
    for sec in range(2):
        for i in range(2):
            a(f"v_cmp_lt_i32 {mk(sec,i,0)}, {16*sec}, v{vOF+2+i}")
    a("s_nop 1")
    for sec in range(2):
        for i in range(2):
            a(f"v_cndmask_b32 v{vS+2*sec+i}, v{t5}, v{vOF+4+i}, {mk(sec,i,0)}")
    for sec in range(2):
        for i in range(2):
            a(f"buffer_load_dwordx4 {vr(vREC+8*sec+4*i,4)}, v{vS+2*sec+i}, s[{sWS}:{sWS+3}], 0 offen offset:{64*sec}")
    for sec in range(2):
        for i in range(2):
            for u in range(1, 4):
                a(f"v_cmp_lt_i32 {mk(sec,i,u)}, {16*sec+u}, v{vOF+2+i}")
    a(f"""
    s_waitcnt vmcnt(4) lgkmcnt(0)
    s_barrier
    v_lshlrev_b32 v{t2}, 4, v{vLANE}
    s_lshl_b32 s{sU+5}, s{sU+4}, 10
    v_add_u32 v{t2}, {XS}, v{t2}
    v_add_u32 v{t5}, s{sU+5}, v{t2}
    """)
    for s in range(4):
        a(f"ds_read_b128 {vr(vQB+4*s,4)}, v{t5} offset:{(16+4*s)*1024}")
    for kb in range(5):
        for ct in range(4):
            f = 4 * kb + ct if kb < 4 else 32 + ct
            a(f"ds_read_b128 {W(kb,ct)}, v{t2} offset:{f*1024}")
    a(f"""
    v_max_u32 v{vOF}, v{vOF}, v{vOF+1}
    v_mov_b32 v{vOF+1}, {MISC}
    s_cmp_eq_u32 s{sMODE}, 0
    s_cbranch_scc1 K2_fastchk
    ds_max_u32 v{vOF+1}, v{vOF} offset:4
    s_branch K2_chkdone
K2_fastchk:
    v_cmp_lt_u32 vcc, 32, v{vOF}
    s_and_saveexec_b64 s[{sU+8}:{sU+9}], vcc
    s_cbranch_execz K2_chknone
    v_mov_b32 v{vOF+1}, {HIST+252}
    v_mov_b32 v{vOF}, 0x100000
    ds_max_u32 v{vOF+1}, v{vOF}
K2_chknone:
    s_mov_b64 exec, -1
K2_chkdone:
    v_lshlrev_b32 v{vR}, 16, v{vR}
    v_mul_f32 v{vR}, {hex(LOG2E_NEG)}, v{vR}
    s_mov_b32 s{sU+6}, {hex(LOG2E_NEG)}
    s_waitcnt lgkmcnt(0)
    """)
    for s in range(4):
        c = "0" if s == 0 else vr(vQZ, 16)
        a(f"v_mfma_f32_32x32x16_bf16 {vr(vQZ,16)}, {vr(vQA+4*s,4)}, {vr(vQB+4*s,4)}, {c}")
    a(f"""
    s_lshr_b32 s{sU+7}, s{sW}, 2
    s_mul_i32 s{sU+7}, s{sU+7}, {32*RS}
    s_lshl_b32 s{sU+8}, s{sU+4}, 7
    s_add_u32 s{sU+7}, s{sU+7}, s{sU+8}
    s_movk_i32 s{sU+8}, {4*RS}
    v_mad_u32_u24 v{vCHK}, v{t4}, s{sU+8}, v{vCOL4}
    v_add_u32 v{vCHK}, s{sU+7}, v{vCHK}
    s_nop 7
    s_nop 3
    """)

    def qvals(rng):
        for r in rng:
            a(f"v_fma_f32 v{vQZ+r}, v{vQZ+r}, s{sU+6}, v{vR}")
        for r in rng:
            a(f"v_cvt_pk_bf16_f32 v{vQB+r}, v{vQZ+r}, v{vQZ+r}")
        for r in rng:
            a(f"v_and_b32 v{vQB+r}, 0xffff0000, v{vQB+r}")
        for r in rng:
            a(f"v_sub_f32 v{vQA+r}, v{vQZ+r}, v{vQB+r}")
        for r in rng:
            a(f"v_cvt_pk_bf16_f32 v{vQB+r}, v{vQB+r}, v{vQA+r}")
        for r in rng:
            a(f"ds_write_b32 v{vCHK}, v{vQB+r} offset:{QOFF+(8*(r>>2)+(r&3))*RS}")
    qvals(range(4))
    a(f"s_cmp_ge_u32 s{sW}, 4\ns_cbranch_scc1 K2_qdone")
    qvals(range(4, 16))
    a(f"""
K2_qdone:
    v_mov_b32 v{t5}, 4
    v_mov_b32 v{t2}, {HIST}
    s_waitcnt vmcnt(0)
    """)
    stamp(a, opt, 2)

    def slot1(sec, i, u):
        n = 8 * sec + 4 * i + u
        a(f"""
        v_and_b32_sdwa v{vHA+n}, v{vREC+n}, s{sCFC} dst_sel:DWORD dst_unused:UNUSED_PAD src0_sel:BYTE_3 src1_sel:DWORD
        v_and_b32 v{vEID+8+n}, 0xfff, v{vREC+n}
        v_add_u32 v{t0}, v{vHA+n}, v{t2}
        v_bfe_u32 v{vREC+n}, v{vREC+n}, 12, 14
        ds_add_rtn_u32 v{vRK+n}, v{t0}, v{t5}
        v_add_u32 v{vEID+8+n}, v{vEID+8+n}, v{vOF+6+i}
        v_mad_u32_u24 v{vREC+n}, v{vHA+n}, s{sC33}, v{vREC+n}
        """)
    for i in range(2):
        for u in range(4):
            a(f"s_mov_b64 exec, {mk(0,i,u)}")
            slot1(0, i, u)
    for i in range(2):
        for u in range(4):
            a(f"s_mov_b64 exec, {mk(1,i,u)}\ns_cbranch_execz K2_s1skip{i}")
            slot1(1, i, u)
        a(f"K2_s1skip{i}:")
    a(f"""
    s_mov_b64 exec, -1
    v_lshlrev_b32 v{vS}, 2, v{vLANE}
    v_add_u32 v{vS}, {HIST}, v{vS}
    s_waitcnt lgkmcnt(0)
    s_barrier
    ds_read_b32 v{vS+1}, v{vS}
    s_waitcnt lgkmcnt(0)
    v_add_u32 v{vS+2}, 28, v{vS+1}
    v_and_b32 v{vS+2}, -32, v{vS+2}
    v_mov_b32 v{vS+3}, v{vS+2}
    """)
    scan64(a, vS + 3)
    a(f"""
    v_sub_u32 v{vEO}, v{vS+2}, v{vS+1}
    v_readlane_b32 s{sNT}, v{vS+3}, 63
    v_sub_u32 v{vS+3}, v{vS+3}, v{vS+2}
    v_add_u32 v{vS+3}, {SRCL}, v{vS+3}
    v_cvt_f32_u32 v{vEO}, v{vEO}
    v_mul_f32 v{vEO}, -0.5, v{vEO}
    v_mul_f32 v{vEO}, 0.5, v{vEO}
    s_cmp_gt_u32 s{sNT}, {CAPP*4}
    s_cbranch_scc1 K2_togeneral
    ds_write_b32 v{vS}, v{vEO} offset:{NPAD-HIST}
    s_cmp_lg_u32 s{sW}, 0
    s_cbranch_scc1 K2_nocnt
    ds_add_u32 v{vS}, v{vS+1} offset:{CNTT-HIST}
K2_nocnt:
    s_add_u32 s{sNT}, s{sNT}, 124
    s_lshr_b32 s{sNT}, s{sNT}, 7
    s_add_u32 s{sNT}, s{sNT}, 7
    s_sub_u32 s{sNT}, s{sNT}, s{sW}
    s_lshr_b32 s{sNT}, s{sNT}, 3
    """)
    for n in range(8):
        a(f"ds_bpermute_b32 v{vHA+n}, v{vHA+n}, v{vS+3}")
    for n in range(8):
        a(f"s_waitcnt lgkmcnt({7-n})\nv_add_u32 v{vRK+n}, v{vRK+n}, v{vHA+n}")
    for n in range(8):
        a(f"s_mov_b64 exec, s[{sMK+2*n}:{sMK+2*n+1}]")
        a(f"ds_write2st64_b32 v{vRK+n}, v{vREC+n}, v{vEID+8+n} offset0:0 offset1:{(ELST-SRCL)//256}")
    for i in range(2):
        a(f"s_cmp_eq_u64 {mk(1,i,0)}, 0\ns_cbranch_scc1 K2_s2skip{i}\ns_mov_b64 exec, -1")
        for u in range(4):
            n = 8 + 4 * i + u
            a(f"ds_bpermute_b32 v{vHA+n}, v{vHA+n}, v{vS+3}")
        a("s_waitcnt lgkmcnt(0)")
        for u in range(4):
            n = 8 + 4 * i + u
            a(f"""
            s_mov_b64 exec, {mk(1,i,u)}
            v_add_u32 v{vRK+n}, v{vRK+n}, v{vHA+n}
            ds_write2st64_b32 v{vRK+n}, v{vREC+n}, v{vEID+8+n} offset0:0 offset1:{(ELST-SRCL)//256}
            """)
        a(f"K2_s2skip{i}:")
    a(f"""
    s_mov_b64 exec, -1
    s_waitcnt lgkmcnt(0)
    s_barrier
    """)
    stamp(a, opt, 3)
    a(f"""
    ds_read_b128 {vr(vS,4)}, v{vPS}
    ds_read_b32 v{vEO}, v{vPE} offset:{ELST-SRCL}
    ds_read_b32 v{vBQ}, v{vPE} offset:{ELST-SRCL+1024}
    ds_read_b32 v{vNR}, v{vPN}
    ds_read_b32 v{vNR+1}, v{vPN} offset:32
    v_lshrrev_b32 v{t4}, 5, v{vLANE}
    s_lshr_b32 s{sU+7}, s{sW}, 2
    s_lshl_b32 s{sU+7}, s{sU+7}, 7
    s_add_u32 s{sU+7}, s{sU+7}, {NPAD}
    v_lshl_add_u32 v{t0}, v{t4}, 4, s{sU+7}
    s_waitcnt lgkmcnt(3)
    """)
    for l in x_offs():
        a(l)
    a(e_off())
    for i in range(4):
        a(dma_x(i)[0] + "\ns_nop 0\n" + dma_x(i)[1])
    a(dma_e(0, opt)[0] + "\ns_nop 0\n" + dma_e(0, opt)[1])
    a(f"""
    s_waitcnt lgkmcnt(2)
    v_lshl_add_u32 v{vEO}, v{vBQ}, 5, v{vEC}
    """)
    a(dma_e(1, opt)[0] + "\ns_nop 0\n" + dma_e(1, opt)[1])
    a(f"""
    ds_read_b128 {vr(vS,4)}, v{vPS} offset:1024
    ds_read_b32 v{vEO}, v{vPE} offset:{ELST-SRCL+2048}
    v_lshlrev_b32 v{vCOL8}, 1, v{vCOL4}
    s_lshr_b32 s{sU+7}, s{sW}, 2
    s_mul_i32 s{sU+7}, s{sU+7}, {32*RA}
    s_and_b32 s{sU+8}, s{sW}, 3
    s_lshl_b32 s{sU+8}, s{sU+8}, 8
    s_add_u32 s{sU+7}, s{sU+7}, s{sU+8}
    s_movk_i32 s{sU+8}, {4*RA}
    v_mad_u32_u24 v{vCA}, v{t4}, s{sU+8}, v{vCOL8}
    v_add_u32 v{vCA}, s{sU+7}, v{vCA}
    """)
    for g in range(4):
        a(f"ds_read_b128 {vr(vD[0]+4*g,4)}, v{t0} offset:{32*g}")

    def corr(rng):
        for r in rng:
            a(f"v_exp_f32 v{vE+r}, v{vQZ+r}")
        for r in rng:
            a(f"v_add_f32 v{vE+r}, 1.0, v{vE+r}")
        for r in rng:
            a(f"v_rcp_f32 v{vE+r}, v{vE+r}")
        a("s_waitcnt lgkmcnt(0)")
        for r in rng:
            a(f"v_mul_f32 v{vE+r}, v{vE+r}, v{vQZ+r}")
        for r in rng:
            a(f"v_mul_legacy_f32 v{vE+r}, v{vE+r}, v{vD[0]+r}")
        for r in rng:
            a(f"v_cvt_f64_f32 {vr(vA+2*(r%8),2)}, v{vE+r}")
            a(f"ds_add_f64 v{vCA}, {vr(vA+2*(r%8),2)} offset:{AGG+(8*(r>>2)+(r&3))*RA}")
            if r == 7:
                a("s_waitcnt lgkmcnt(0)")
    corr(range(4))
    a(f"s_cmp_ge_u32 s{sW}, 4\ns_cbranch_scc1 K2_cdone")
    corr(range(4, 16))
    a(f"""
K2_cdone:
    {q_addr(0)}
    {q_addr(1)}
    """)
    for l in x_offs():
        a(l)
    a(e_off())
    a(f"""
    v_add_u32 v{vNA}, {40*RA}, v{vCOL8}
    v_add_u32 v{vNA+1}, {40*RA}, v{vCOL8}
    v_mov_b32 v{vR}, 0
    v_mov_b32 v{vR+1}, 0
    v_mov_b32 v{vT}, 0
    v_mov_b32 v{vT+1}, 0
    v_mov_b32 v{vM0}, 1.0
    v_mov_b32 v{vM0+1}, 1.0
    s_waitcnt lgkmcnt(0)
    v_mov_b32 v{vCHK}, 1.0
    s_cmp_eq_u32 s{sNT}, 0
    s_cbranch_scc1 K2_loop_done
    ds_read_b32 v{vBQ}, v{vNQ} offset:{QOFF}
    ds_read_b32 v{vBQ+1}, v{vNQ+1} offset:{QOFF}
    s_waitcnt vmcnt(1)
    """)
    stamp(a, opt, 4)
    if opt.get("stamp"):
        a("s_waitcnt vmcnt(0)")
    for l in a_reads(0):
        a(l)
    a("s_waitcnt lgkmcnt(0)")
    mf = mfmas(vD[0], 0)
    for i in range(4):
        a(dma_x(i)[0] + "\n" + mf[i] + "\n" + dma_x(i)[1])
    a(dma_e(0, opt)[0] + "\n" + mf[4] + "\n" + dma_e(0, opt)[1])
    a(mf[5])
    a(f"""
    s_nop 7
    s_cmp_eq_u32 s{sMODE}, 0
    s_cbranch_scc0 K2_loopD
    """)
    main_loop(a, False, opt)
    main_loop(a, True, opt)
    a(f"""
K2_loop_done:
    s_mov_b32 s{sU}, 0x7b800000
    v_cmp_le_f32 vcc, s{sU}, v{vCHK}
    v_mov_b32 v{t0}, {MISC}
    v_mov_b32 v{t1}, 1
    s_and_saveexec_b64 s[{sU+8}:{sU+9}], vcc
    s_cbranch_execz K2_noflag
    ds_write_b32 v{t0}, v{t1}
K2_noflag:
    s_mov_b64 exec, -1
    v_and_b32 v{t2}, 15, v{vLANE}
    v_lshrrev_b32 v{t3}, 4, v{vLANE}
    s_and_b32 s{sU+1}, s{sW}, 1
    s_lshr_b32 s{sU+2}, s{sW}, 1
    s_lshl_b32 s{sU+3}, s{sU+1}, 6
    v_lshlrev_b32 v{t4}, 3, v{t3}
    buffer_load_dwordx2 {vr(vB2,2)}, v{t4}, s[{sB2}:{sB2+3}], s{sU+3} offen
    buffer_load_dwordx2 {vr(vB2+2,2)}, v{t4}, s[{sB2}:{sB2+3}], s{sU+3} offen offset:32
    s_lshl_b32 s{sU+3}, s{sU+1}, 13
    s_add_u32 s{sU+3}, s{sU+3}, {W2L}
    v_lshl_add_u32 v{t5}, v{vLANE}, 4, s{sU+3}
    """)
    for o in range(2):
        for s in range(4):
            a(f"ds_read_b128 {vr(vE-32+16*o+4*s,4)}, v{t5} offset:{(4*o+s)*1024}")
    stamp(a, opt, 5)
    a(f"""
    s_waitcnt vmcnt(0) lgkmcnt(0)
    s_barrier
    s_cmp_eq_u32 s{sMODE}, 0
    s_cbranch_scc1 K2_epi
    ds_read_b32 v{t1}, v{t0} offset:4
    s_add_u32 s{sGRP}, s{sGRP}, 1
    s_mov_b32 s{sFIRST}, 0
    s_waitcnt lgkmcnt(0)
    v_readfirstlane_b32 s{sU+4}, v{t1}
    s_cmp_lt_u32 s{sGRP}, 4
    s_cbranch_scc1 K2_rebatch
    s_mov_b32 s{sGRP}, 0
    s_add_u32 s{sR32}, s{sR32}, 32
    s_cmp_lt_u32 s{sR32}, s{sU+4}
    s_cbranch_scc1 K2_rebatch
K2_epi:
    s_cmp_ge_u32 s{sW}, 6
    s_cbranch_scc1 K2_epi_done
    s_lshl_b32 s{sU+4}, s{sU+2}, 4
    v_add_u32 v{t2}, s{sU+4}, v{t2}
    v_lshlrev_b32 v{t5}, 6, v{t3}
    v_mad_u32_u24 v{t5}, v{t2}, s{sCRA}, v{t5}
    v_lshlrev_b32 v{t4}, 2, v{t2}
    v_add_u32 v{t4}, {CNTT}, v{t4}
    ds_read_b32 v{t1}, v{t4}
    """)
    vG = [24, 40, 88, 104]
    for s in range(4):
        if s == 3:
            a("s_waitcnt lgkmcnt(8)")
        for u in range(4):
            a(f"ds_read_b128 {vr(vG[s]+4*u,4)}, v{t5} offset:{AGG+256*s+16*u}")
    a(f"""
    v_lshlrev_b32 v{t4}, 3, v{t3}
    v_lshl_add_u32 v{t4}, v{t2}, 7, v{t4}
    s_lshl_b32 s{sU+5}, s{sNB}, 7
    s_lshl_b32 s{sU+6}, s{sU+1}, 6
    s_add_u32 s{sU+5}, s{sU+5}, s{sU+6}
    v_lshlrev_b32 v2, 16, v{vB2}
    v_and_b32 v3, 0xffff0000, v{vB2}
    v_lshlrev_b32 v4, 16, v{vB2+1}
    v_and_b32 v5, 0xffff0000, v{vB2+1}
    v_lshlrev_b32 v6, 16, v{vB2+2}
    v_and_b32 v7, 0xffff0000, v{vB2+2}
    v_lshlrev_b32 v8, 16, v{vB2+3}
    v_and_b32 v9, 0xffff0000, v{vB2+3}
    """)
    for s in range(4):
        a(f"s_waitcnt lgkmcnt({12-4*s})")
        for j in range(8):
            a(f"v_cvt_f32_f64 v{vG[s]+j}, {vr(vG[s]+2*j,2)}")
        for j in range(4):
            a(f"v_cvt_pk_bf16_f32 v{vG[s]+j}, v{vG[s]+2*j}, v{vG[s]+2*j+1}")
    a(f"""
    v_cvt_f32_u32 v{t1}, v{t1}
    v_mul_f32 v{t1}, 0.5, v{t1}
    v_mul_f32 v{t1}, 0.5, v{t1}
    """)
    for s in range(4):
        for o in range(2):
            c = "0" if s == 0 else vr(12 + 4 * o, 4)
            a(f"v_mfma_f32_16x16x32_bf16 {vr(12+4*o,4)}, {vr(vE-32+16*o+4*s,4)}, {vr(vG[s],4)}, {c}")
    for j in range(8):
        a(f"v_mul_f32 v{2+j}, v{t1}, v{2+j}")
    a(f"""
    s_mov_b32 s{sU+6}, {hex(LN2_NEG)}
    v_cmp_gt_u32 vcc, s{sNN}, v{t2}
    s_nop 0
    s_and_saveexec_b64 s[{sU+8}:{sU+9}], vcc
    s_cbranch_execz K2_epi_done
    """)
    for j in range(8):
        a(f"v_fma_f32 v{2+j}, v{12+j}, s{sU+6}, v{2+j}")
    for j in range(4):
        a(f"v_cvt_pk_bf16_f32 v{24+j}, v{2+2*j}, v{3+2*j}")
    a(f"""
    buffer_store_dwordx2 v[24:25], v{t4}, s[{sO}:{sO+3}], s{sU+5} offen
    buffer_store_dwordx2 v[26:27], v{t4}, s[{sO}:{sO+3}], s{sU+5} offen offset:32
    v_sub_f32 v2, v2, v2
    """)
    for j in range(1, 8):
        a(f"v_fma_f32 v2, v{2+j}, 0, v2")
    a(f"""
    v_cmp_u_f32 vcc, v2, v2
    v_mov_b32 v{t1}, 1
    s_and_b64 exec, exec, vcc
    s_cbranch_execz K2_epi_done
    ds_write_b32 v{t0}, v{t1}
K2_epi_done:
    s_mov_b64 exec, -1
    """)
    stamp(a, opt, 6)
    a(f"""
    s_cmp_lg_u32 s{sMODE}, 0
    s_cbranch_scc1 K2_end
    s_waitcnt lgkmcnt(0)
    s_barrier
    ds_read_b32 v{t1}, v{t0}
    s_waitcnt lgkmcnt(0)
    v_readfirstlane_b32 s{sU+4}, v{t1}
    s_cmp_eq_u32 s{sU+4}, 0
    s_cbranch_scc1 K2_end
K2_togeneral:
    s_mov_b32 s{sMODE}, 1
    s_mov_b32 s{sR32}, 0
    s_mov_b32 s{sGRP}, 0
    s_mov_b32 s{sFIRST}, 1
K2_rebatch:
    s_waitcnt vmcnt(0) lgkmcnt(0)
    s_barrier
    s_branch K2_batch
K2_end:
    s_endpgm
    """)


HDR = """; Edge-featured MPNN: K1 buckets the edges by destination range, K2 sorts each bucket by
; @launch kernel=mpnn_bucket_kernel grid=(256,1,1) block=(704,1,1) lds=12288
; @launch kernel=mpnn_edge_kernel grid=(256,1,1) block=(512,1,1) lds={lds2}
.amdgcn_target "amdgcn-amd-amdhsa--gfx950"
.text
"""


def kd(name, vgpr, sgpr, accum):
    return f""".amdhsa_kernel {name}
  .amdhsa_next_free_vgpr {vgpr}
  .amdhsa_next_free_sgpr {sgpr}
  .amdhsa_accum_offset {accum}
  .amdhsa_group_segment_fixed_size 0
  .amdhsa_kernarg_size 88
  .amdhsa_user_sgpr_count 2
  .amdhsa_user_sgpr_kernarg_segment_ptr 1
  .amdhsa_system_sgpr_workgroup_id_x 1
.end_amdhsa_kernel
"""


def generate(opt=None):
    opt = opt or {}
    out = HDR.format(lds2=LDS2)
    for name, fn in (("mpnn_bucket_kernel", gen_k1), ("mpnn_edge_kernel", gen_k2)):
        a = Asm()
        fn(a, opt)
        out += f".globl {name}\n.p2align 8\n.type {name},@function\n{name}:\n" + a.text()
    out += '.section .rodata,"a"\n.p2align 6\n'
    st = opt.get("stamp")
    out += kd("mpnn_bucket_kernel", 144 if st else 32, 102 if st else 40, 144 if st else 32)
    out += ".p2align 6\n"
    out += kd("mpnn_edge_kernel", 224, 102, 144)
    return out


if __name__ == "__main__":
    opt = {}
    for arg in sys.argv[2:]:
        k, v = arg.split("=")
        opt[k] = int(v) if v.lstrip("-").isdigit() else v
    open(sys.argv[1], "w").write(generate(opt))
```

```python
import sys, struct

N, E = 10000, 640000
NCH, CH = 256, 2500
CHS = 10240
REC = 0
OFF = NCH * CHS
WF = OFF + NCH * 1024
WSZ = WF + 52 * 1024
STAMP = 4 << 20
LOG2E_NEG = struct.unpack("<I", struct.pack("<f", -1.4426950408889634))[0]
LN2_NEG = struct.unpack("<I", struct.pack("<f", -0.6931471805599453))[0]

RS = 528
RA = 1040
QOFF = 0
AGG = 21760
SRCL = 64512
ELST = SRCL + 16384
XS = ELST + 16384
ES = XS + 32768
W2L = ES + 16384
HIST = W2L + 16384
CNTT = HIST + 256
NPAD = CNTT + 256
MISC = NPAD + 256
LDS2 = MISC + 64
CAPP = 3328
DUMMY_S = 0xFFFF | (40 << 16)
DUMMY_E = 0x00FFFFFF


class Asm:
    def __init__(self):
        self.L = []

    def __call__(self, s):
        for line in s.strip("\n").split("\n"):
            line = line.strip()
            if not line:
                continue
            self.L.append(line if line.endswith(":") or line.startswith(".") else "    " + line)

    def text(self):
        return "\n".join(self.L) + "\n"


def srd(a, d, lo, hi, size):
    a(f"s_mov_b32 s{d}, s{lo}\ns_and_b32 s{d+1}, s{hi}, 0xffff\ns_mov_b32 s{d+2}, {size}\ns_mov_b32 s{d+3}, 0x20000")


def scan64(a, v):
    for m in ("row_shr:1 row_mask:0xf", "row_shr:2 row_mask:0xf", "row_shr:4 row_mask:0xf", "row_shr:8 row_mask:0xf",
              "row_bcast:15 row_mask:0xa", "row_bcast:31 row_mask:0xc"):
        a(f"s_nop 1\nv_add_u32_dpp v{v}, v{v}, v{v} {m} bank_mask:0xf")


def stamp(a, opt, idx, sreg=96, clk=False):
    if not opt.get("stamp"):
        return
    if opt.get("dbg") and clk:
        return
    a(f"""
    {"s_memtime" if clk else "s_memrealtime"} s[{sreg}:{sreg+1}]
    s_waitcnt lgkmcnt(0)
    v_mov_b32 v136, s{sreg}
    v_mov_b32 v137, s98
    buffer_store_dword v136, v137, s[92:95], 0 offen offset:{idx*4}
    """)


def stamp_setup(a, opt, wsreg, kidx, wavereg):
    if not opt.get("stamp"):
        return
    if opt.get("dbg"):
        a(f"""
        s_load_dwordx2 s[92:93], s[0:1], 72
        s_waitcnt lgkmcnt(0)
        s_and_b32 s93, s93, 0xffff
        s_mov_b32 s94, 64
        s_mov_b32 s95, 0x20000
        s_lshl_b32 s98, s2, 4
        s_add_u32 s98, s98, s{wavereg}
        s_cmp_eq_u32 s98, {(opt.get("dbg")-1)*16}
        s_cselect_b32 s98, {kidx*32}, 0x1000
        """)
        return
    a(f"""
    s_add_u32 s92, s{wsreg}, {STAMP}
    s_addc_u32 s93, s{wsreg+1}, 0
    s_and_b32 s93, s93, 0xffff
    s_mov_b32 s94, {1<<20}
    s_mov_b32 s95, 0x20000
    s_add_u32 s98, s2, {kidx*256}
    s_lshl_b32 s98, s98, 4
    s_add_u32 s98, s98, s{wavereg}
    s_lshl_b32 s98, s98, 6
    """)


def gen_k1(a, opt):
    H1, ST1, SO1 = 0, 1024, 2048
    a(f"""
    s_cmp_ge_u32 s2, {NCH}
    s_cbranch_scc1 K1_end
    s_load_dwordx4 s[4:7], s[0:1], 16
    s_load_dwordx2 s[8:9], s[0:1], 80
    s_load_dwordx2 s[10:11], s[0:1], 32
    s_load_dwordx2 s[24:25], s[0:1], 48
    v_lshrrev_b32 v1, 6, v0
    v_lshlrev_b32 v2, 2, v0
    v_readfirstlane_b32 s3, v1
    v_mov_b32 v3, 0
    s_cmp_eq_u32 s3, 10
    s_cbranch_scc1 K1_prep
    s_cmp_ge_u32 s3, 4
    s_cbranch_scc1 K1_nozero
    ds_write_b32 v2, v3 offset:{H1}
K1_nozero:
    v_lshlrev_b32 v3, 4, v0
    s_mul_i32 s28, s2, {CH*4}
    s_mul_i32 s29, s2, {CHS}
    s_movk_i32 s30, 625
    v_cmp_gt_u32 vcc, s30, v0
    s_mov_b32 s31, 429497
    s_mov_b64 s[32:33], vcc
    s_waitcnt lgkmcnt(0)
    """)
    srd(a, 12, 4, 5, E * 4)
    srd(a, 16, 6, 7, E * 4)
    srd(a, 20, 8, 9, WSZ)
    stamp_setup(a, opt, 8, 0, 3)
    stamp(a, opt, 0)
    a(f"""
    s_mov_b64 exec, s[32:33]
    buffer_load_dwordx4 v[4:7], v3, s[16:19], s28 offen
    buffer_load_dwordx4 v[8:11], v3, s[12:15], s28 offen
    s_barrier
    v_mov_b32 v28, 1
    s_waitcnt vmcnt(1)
    """)
    for i in range(4):
        a(f"v_mul_u32_u24 v{12+i}, s31, v{4+i}")
    for i in range(4):
        a(f"v_lshrrev_b32 v{12+i}, 24, v{12+i}")
    for i in range(4):
        a(f"v_mad_u32_u24 v{16+i}, v{12+i}, s30, 15")
    for i in range(4):
        a(f"v_lshlrev_b32 v{12+i}, 2, v{12+i}")
    for i in range(4):
        a(f"ds_add_rtn_u32 v{20+i}, v{12+i}, v28 offset:{H1}")
    for i in range(4):
        a(f"v_lshrrev_b32 v{16+i}, 4, v{16+i}")
    for i in range(4):
        a(f"v_sub_u32 v{16+i}, v{4+i}, v{16+i}")
    for i in range(4):
        a(f"v_add_u32 v{24+i}, {i}, v2")
    for i in range(4):
        a(f"v_lshl_or_b32 v{16+i}, v{16+i}, 26, v{24+i}")
    a("s_waitcnt vmcnt(0)")
    for i in range(4):
        a(f"v_lshl_or_b32 v{16+i}, v{8+i}, 12, v{16+i}")
    stamp(a, opt, 1)
    a(f"""
    s_waitcnt lgkmcnt(0)
    s_barrier
    s_mov_b64 exec, -1
    v_and_b32 v29, 63, v0
    v_lshlrev_b32 v29, 4, v29
    ds_read_b128 v[4:7], v29 offset:{H1}
    s_waitcnt lgkmcnt(0)
    v_add_u32 v9, v4, v5
    v_add_u32 v10, v9, v6
    v_add_u32 v11, v10, v7
    v_mov_b32 v8, v11
    """)
    scan64(a, 8)
    a(f"""
    v_sub_u32 v24, v8, v11
    v_add_u32 v25, v24, v4
    v_add_u32 v26, v24, v9
    v_add_u32 v27, v24, v10
    ds_write_b128 v29, v[24:27] offset:{ST1}
    s_cmp_lg_u32 s3, 0
    s_cbranch_scc1 K1_nooff
    v_lshl_or_b32 v4, v4, 16, v24
    v_lshl_or_b32 v5, v5, 16, v25
    v_lshl_or_b32 v6, v6, 16, v26
    v_lshl_or_b32 v7, v7, 16, v27
    s_lshl_b32 s34, s2, 10
    s_add_u32 s34, s34, {OFF}
    buffer_store_dwordx4 v[4:7], v29, s[20:23], s34 offen
K1_nooff:
    s_mov_b64 exec, s[32:33]
    s_waitcnt lgkmcnt(0)
    """)
    for i in range(4):
        a(f"ds_read_b32 v{24+i}, v{12+i} offset:{ST1}")
    for i in range(4):
        a(f"s_waitcnt lgkmcnt({3-i})\nv_add_lshl_u32 v{24+i}, v{24+i}, v{20+i}, 2")
    for i in range(4):
        a(f"ds_write_b32 v{24+i}, v{16+i} offset:{SO1}")
    a(f"""
    s_waitcnt lgkmcnt(0)
    s_barrier
    ds_read_b128 v[4:7], v3 offset:{SO1}
    s_waitcnt lgkmcnt(0)
    buffer_store_dwordx4 v[4:7], v3, s[20:23], s29 offen
    """)
    stamp(a, opt, 2)
    a("""
    s_endpgm
K1_prep:
    s_cmp_ge_u32 s2, 52
    s_cbranch_scc1 K1_end
    v_and_b32 v1, 63, v0
    s_waitcnt lgkmcnt(0)
    """)
    srd(a, 20, 8, 9, WSZ)
    a(f"""
    s_cmp_ge_u32 s2, 36
    s_cbranch_scc1 K1_prep2
    """)
    srd(a, 12, 10, 11, 144 * 128 * 2)
    a(f"""
    s_lshr_b32 s28, s2, 2
    s_and_b32 s29, s2, 3
    s_lshl_b32 s30, s28, 12
    s_lshl_b32 s29, s29, 6
    s_add_u32 s30, s30, s29
    v_and_b32 v2, 31, v1
    v_lshrrev_b32 v3, 5, v1
    v_lshlrev_b32 v2, 1, v2
    v_lshl_add_u32 v2, v3, 11, v2
    s_and_b32 s28, s28, 12
    s_cmp_eq_u32 s28, 4
    s_cselect_b32 s31, 1.0, {hex(LOG2E_NEG)}
    """)
    for j in range(8):
        a(f"buffer_load_ushort v{4+j}, v2, s[12:15], s30 offen offset:{256*j}")
    a("""
    s_branch K1_prep3
K1_prep2:
    """)
    srd(a, 12, 24, 25, 128 * 64 * 2)
    a(f"""
    s_sub_u32 s28, s2, 36
    s_and_b32 s29, s28, 3
    s_lshr_b32 s28, s28, 2
    s_lshl_b32 s30, s29, 12
    s_lshl_b32 s28, s28, 5
    s_add_u32 s30, s30, s28
    v_and_b32 v2, 15, v1
    v_lshrrev_b32 v3, 4, v1
    v_lshlrev_b32 v2, 1, v2
    v_lshl_add_u32 v2, v3, 10, v2
    s_mov_b32 s31, 1.0
    """)
    for j in range(8):
        a(f"buffer_load_ushort v{4+j}, v2, s[12:15], s30 offen offset:{128*j}")
    a(f"""
K1_prep3:
    s_lshl_b32 s28, s2, 10
    s_add_u32 s28, s28, {WF}
    v_lshlrev_b32 v1, 4, v1
    s_barrier
    s_waitcnt vmcnt(0)
    """)
    for j in range(8):
        a(f"v_lshlrev_b32 v{4+j}, 16, v{4+j}")
    for j in range(8):
        a(f"v_mul_f32 v{4+j}, s31, v{4+j}")
    for j in range(4):
        a(f"v_cvt_pk_bf16_f32 v{12+j}, v{4+2*j}, v{5+2*j}")
    a("""
    buffer_store_dwordx4 v[12:15], v1, s[20:23], s28 offen
    s_barrier
    s_barrier
K1_end:
    s_endpgm
    """)


vLANE = 1
vXC0, vXC1, vEC, vCOL4 = 2, 3, 4, 5
vAX = 6
vAE = 10
vPS, vPE, vPN = 11, 12, 13
vAQ = 14
vNQ, vNA = 16, 18
vNR = 104
vF = 106
vCOL8 = 110
vCA = 111
vS = 20
vEO, vCHK = 24, 25
vBQ = 26
vT, vM0, vM1, vR = 28, 30, 32, 34
vA = 36
vD = [56, 72]
vE = 88
vQA, vQB, vQZ = 36, 56, 72
vREC = 88
vHA = 36
vRK = 52
vEID = 104
vT0 = 128
vB2 = 20
sW = 3
sX, sE, sWS, sO, sB1, sB2 = 4, 8, 12, 16, 20, 24
sK, sNB, sNN, sMODE, sR32, sGRP, sFIRST, sNT = 28, 29, 30, 31, 32, 33, 34, 35
sMX = 36
sME = 40
sC128, sCFC, sC33 = 42, 43, 44
sCRS, sCRA = 99, 100
sT = 45
sMK = 48
sU = 80


def W(kb, ct):
    b = (kb * 4 + ct) * 4
    return f"a[{b}:{b+3}]"


def vr(b, n):
    return f"v[{b}:{b+n-1}]"


def mfmas(dst, ct):
    L = []
    for kb in range(5):
        c = "0" if kb == 0 else vr(dst, 16)
        L.append(f"v_mfma_f32_32x32x16_bf16 {vr(dst,16)}, {vr(vA+4*kb,4)}, {W(kb,ct)}, {c}")
    L.append(f"v_mfma_f32_32x32x8_bf16 {vr(dst,16)}, {vr(vAQ,2)}, {vr(vBQ,2)}, {vr(dst,16)}")
    return L


def a_reads(epar):
    L = [f"ds_read_b128 {vr(vA+4*s,4)}, v{vAX+s}" for s in range(4)]
    L.append(f"ds_read_b128 {vr(vA+16,4)}, v{vAE} offset:{epar*1024}")
    return L


def x_offs():
    return [f"v_mad_u32_u16 v{vS+i}, v{vS+i}, s{sC128}, v{vXC1 if i & 1 else vXC0}" for i in range(4)]


def e_off():
    return f"v_lshl_add_u32 v{vEO}, v{vEO}, 5, v{vEC}"


def q_addr(i):
    return f"v_mad_u32_u16 v{vNQ+i}, v{vNR+i}, s{sCRS}, v{vCOL4} op_sel:[1,0,0,0]"


def a_addr(i):
    return f"v_mad_u32_u16 v{vNA+i}, v{vNR+i}, s{sCRA}, v{vCOL8} op_sel:[1,0,0,0]"


def flush(ct):
    return [f"v_cvt_f64_f32 {vr(vF,2)}, v{vR}", f"v_cvt_f64_f32 {vr(vF+2,2)}, v{vR+1}",
            f"ds_add_f64 v{vNA}, {vr(vF,2)} offset:{AGG+ct*256}", f"ds_add_f64 v{vNA+1}, {vr(vF+2,2)} offset:{AGG+ct*256}"]


def dma_x(i):
    return (f"s_mov_b32 m0, s{sMX+i}", f"buffer_load_dwordx4 v{vS+i}, s[{sX}:{sX+3}], 0 offen lds")


def dma_e(par, opt):
    return (f"s_mov_b32 m0, s{sME+par}", f"buffer_load_dwordx4 v{vEO}, s[{sE}:{sE+3}], 0 offen {opt.get('eflag','')} lds")


def p_phase(cur, direct):
    L = []
    if direct:
        L.append(f"v_pk_mul_f32 {vr(vR,2)}, {vr(vT,2)}, 1.0 op_sel_hi:[1,0]")
    else:
        L.append(f"v_pk_mul_f32 {vr(vR,2)}, {vr(vR,2)}, {vr(vT,2)}")
    if direct:
        for i in range(8):
            e = vr(vE + 2 * i, 2)
            z = vr(cur + 2 * i, 2)
            L.append(f"v_pk_add_f32 {e}, {e}, 1.0 op_sel_hi:[1,0]")
            L.append(f"v_rcp_f32 v{vE+2*i}, v{vE+2*i}")
            L.append(f"v_rcp_f32 v{vE+2*i+1}, v{vE+2*i+1}")
            L.append("s_nop 0")
            if i == 0:
                L.append(f"v_pk_mul_f32 {vr(vT,2)}, {z}, {e}")
            else:
                L.append(f"v_pk_fma_f32 {vr(vT,2)}, {z}, {e}, {vr(vT,2)}")
        return L
    L.append(f"v_pk_add_f32 {vr(vM1,2)}, {vr(vE,2)}, 1.0 op_sel_hi:[1,0]")
    mc, mn = vM1, vM0
    for i in range(1, 8):
        e = vr(vE + 2 * i, 2)
        ts = vr(cur, 2) if i == 1 else vr(vT, 2)
        L.append(f"v_pk_fma_f32 {vr(vT,2)}, {ts}, {e}, {ts}")
        L.append(f"v_pk_fma_f32 {vr(mn,2)}, {vr(mc,2)}, {e}, {vr(mc,2)}")
        L.append(f"v_pk_fma_f32 {vr(vT,2)}, {vr(cur+2*i,2)}, {vr(mc,2)}, {vr(vT,2)}")
        mc, mn = mn, mc
    assert mc == vM0
    return L


def step(a, par, c, direct, opt):
    cur, nxt = vD[c & 1], vD[(c + 1) & 1]
    ctn = (c + 1) & 3
    mf = mfmas(nxt, ctn)
    ex = [f"v_exp_f32 v{vE+i}, v{cur+i}" for i in range(16)]
    fl = flush((c - 2) & 3)
    o = par * 1024
    if c == 3:
        a("s_waitcnt lgkmcnt(0)")
    a(f"ds_read_b32 v{vBQ}, v{vNQ} offset:{QOFF+ctn*128}\nds_read_b32 v{vBQ+1}, v{vNQ+1} offset:{QOFF+ctn*128}")
    nds = 2
    dx = [dma_x(i) for i in range(4)] if c == 3 else None
    a(mf[0])
    a(fl[0])
    a(fl[1])
    a(ex[0])
    a(fl[2])
    a(ex[1])
    a(fl[3])
    if c == 0:
        a(f"""
        ds_read_b128 {vr(vS,4)}, v{vPS} offset:{o+2048}
        ds_read_b32 v{vEO}, v{vPE} offset:{ELST-SRCL+o+3072}
        """)
        nds += 2
    a(mf[1])
    if not direct:
        a(f"v_rcp_f32 v{vR}, v{vM0}\nv_rcp_f32 v{vR+1}, v{vM0+1}")
    a(ex[2])
    for g in range(3):
        a(mf[2 + g])
        for j in range(3):
            k = 3 * g + j
            if dx is not None and k < 4:
                a(dx[k][0])
            a(ex[3 + k])
            if dx is not None and k < 4:
                a(dx[k][1])
    a(f"s_waitcnt lgkmcnt({nds})")
    a(mf[5])
    if c == 2:
        a("s_waitcnt vmcnt(1)")
        for l in a_reads(par ^ 1):
            a(l)
    a(ex[12])
    a(ex[13])
    if c == 3:
        a(e_off())
        a(dma_e(par ^ 1, opt)[0])
    a(ex[14])
    if c == 3:
        a(dma_e(par ^ 1, opt)[1])
    a(ex[15])
    if not direct:
        a(f"v_max3_f32 v{vCHK}, v{vCHK}, v{vM0}, v{vM0+1}")
    if c == 1:
        a(a_addr(0))
        a(a_addr(1))
        a(f"ds_read_b32 v{vNR}, v{vPN} offset:{o+1024}\nds_read_b32 v{vNR+1}, v{vPN} offset:{o+1024+32}")
        if par == 1:
            for p in (vPS, vPE, vPN):
                a(f"v_add_u32 v{p}, 0x800, v{p}")
        a(f"s_sub_u32 s{sNT}, s{sNT}, 1\ns_cmp_eq_u32 s{sNT}, 0")
    if c == 2:
        a(q_addr(0))
        a(q_addr(1))
        for l in x_offs():
            a(l)
    if opt.get("prio", 1):
        a("s_setprio 1")
    for l in p_phase(cur, direct):
        a(l)


def main_loop(a, direct, opt):
    tag = "D" if direct else "F"
    a(f".p2align 6\nK2_loop{tag}:")
    for par in range(2):
        for c in range(4):
            if opt.get("prio", 1):
                a("s_setprio 0")
            step(a, par, c, direct, opt)
        if par == 0:
            a(f"s_cbranch_scc1 K2_drain{tag}")
        else:
            a(f"s_cbranch_scc0 K2_loop{tag}")
    a(f"K2_drain{tag}:")
    a("s_setprio 0")
    for l in flush(2):
        a(l)
    if direct:
        a(f"v_mov_b32 v{vR}, v{vT}\nv_mov_b32 v{vR+1}, v{vT+1}")
    else:
        a(f"""
        v_rcp_f32 v{vR}, v{vM0}
        v_rcp_f32 v{vR+1}, v{vM0+1}
        v_max3_f32 v{vCHK}, v{vCHK}, v{vM0}, v{vM0+1}
        v_mul_f32 v{vR}, v{vR}, v{vT}
        v_mul_f32 v{vR+1}, v{vR+1}, v{vT+1}
        """)
    a("s_waitcnt lgkmcnt(0)")
    for l in flush(3):
        a(l)
    a("s_branch K2_loop_done")


def gen_k2(a, opt):
    a(f"""
    s_cmp_ge_u32 s2, 256
    s_cbranch_scc1 K2_end
    s_load_dwordx4 s[{sU}:{sU+3}], s[0:1], 0
    s_load_dwordx2 s[{sU+4}:{sU+5}], s[0:1], 80
    s_load_dwordx2 s[{sU+6}:{sU+7}], s[0:1], 40
    s_load_dwordx4 s[{sU+8}:{sU+11}], s[0:1], 56
    v_lshrrev_b32 v2, 6, v0
    v_and_b32 v{vLANE}, 63, v0
    v_readfirstlane_b32 s{sW}, v2
    s_and_b32 s{sK}, s2, 7
    s_lshl_b32 s{sK}, s{sK}, 5
    s_lshr_b32 s{sT}, s2, 3
    s_add_u32 s{sK}, s{sK}, s{sT}
    s_mul_i32 s{sNB}, s{sK}, 625
    s_add_u32 s{sNN}, s{sNB}, 640
    s_add_u32 s{sNB}, s{sNB}, 15
    s_lshr_b32 s{sNB}, s{sNB}, 4
    s_lshr_b32 s{sNN}, s{sNN}, 4
    s_sub_u32 s{sNN}, s{sNN}, s{sNB}
    s_mov_b32 s{sMODE}, {1 if opt.get('force_general') else 0}
    s_mov_b32 s{sR32}, 0
    s_mov_b32 s{sGRP}, 0
    s_mov_b32 s{sFIRST}, 1
    s_movk_i32 s{sC128}, 128
    s_movk_i32 s{sCFC}, 0xfc
    s_movk_i32 s{sC33}, {1 << 14}
    s_movk_i32 s{sCRS}, {RS}
    s_movk_i32 s{sCRA}, {RA}
    s_lshl_b32 s{sMX}, s{sW}, 12
    s_add_u32 s{sMX}, s{sMX}, {XS}
    s_add_u32 s{sMX+1}, s{sMX}, 1024
    s_add_u32 s{sMX+2}, s{sMX}, 2048
    s_add_u32 s{sMX+3}, s{sMX}, 3072
    s_lshl_b32 s{sME}, s{sW}, 11
    s_add_u32 s{sME}, s{sME}, {ES}
    s_add_u32 s{sME+1}, s{sME}, 1024
    s_waitcnt lgkmcnt(0)
    """)
    srd(a, sWS, sU + 4, sU + 5, WSZ)
    srd(a, sX, sU, sU + 1, 0 if opt.get("nox") else N * 128)
    srd(a, sE, sU + 2, sU + 3, 0 if opt.get("noe") else E * 32)
    srd(a, sB1, sU + 6, sU + 7, 256)
    srd(a, sB2, sU + 8, sU + 9, 128)
    srd(a, sO, sU + 10, sU + 11, N * 128)
    stamp_setup(a, opt, sU + 4, 1, sW)
    stamp(a, opt, 0)
    t0, t1, t2, t3, t4, t5 = range(vT0, vT0 + 6)
    vOF = 104
    a(f"""
K2_batch:
    v_lshrrev_b32 v{t0}, 2, v{vLANE}
    s_lshl_b32 s{sT}, s{sW}, 5
    v_add_u32 v{t0}, s{sT}, v{t0}
    s_lshl_b32 s{sT+1}, s{sK}, 2
    v_lshlrev_b32 v{t1}, 10, v{t0}
    s_add_u32 s{sT+1}, s{sT+1}, {OFF}
    s_add_u32 s{sT+2}, s{sT+1}, 16384
    buffer_load_dword v{vOF}, v{t1}, s[{sWS}:{sWS+3}], s{sT+1} offen
    buffer_load_dword v{vOF+1}, v{t1}, s[{sWS}:{sWS+3}], s{sT+2} offen
    v_lshlrev_b32 v{t2}, 4, v{vLANE}
    s_lshl_b32 s{sT}, s{sW}, 10
    s_add_u32 s{sU}, s{sT}, {WF}
    s_add_u32 s{sU+1}, s{sT}, {XS}
    """)
    for r in range(4):
        a(f"""
        s_add_u32 m0, s{sU+1}, {r*8192}
        s_add_u32 s{sU+2}, s{sU}, {r*8192}
        buffer_load_dwordx4 v{t2}, s[{sWS}:{sWS+3}], s{sU+2} offen lds
        """)
    a(f"""
    s_mov_b32 s{sU+3}, {W2L-4096}
    s_cmp_lt_u32 s{sW}, 4
    s_cmov_b32 s{sU+3}, {XS+32768}
    s_add_u32 m0, s{sU+3}, s{sT}
    s_add_u32 s{sU+2}, s{sU}, {32*1024}
    buffer_load_dwordx4 v{t2}, s[{sWS}:{sWS+3}], s{sU+2} offen lds
    s_add_u32 m0, s{sT}, {W2L+4096}
    s_add_u32 s{sU+2}, s{sU}, {40*1024}
    buffer_load_dwordx4 v{t2}, s[{sWS}:{sWS+3}], s{sU+2} offen lds
    s_and_b32 s{sU+3}, s{sT}, 3072
    s_add_u32 m0, s{sU+3}, {W2L+12288}
    s_add_u32 s{sU+2}, s{sU+3}, {WF+48*1024}
    buffer_load_dwordx4 v{t2}, s[{sWS}:{sWS+3}], s{sU+2} offen lds
    v_and_b32 v{t3}, 31, v{vLANE}
    v_lshrrev_b32 v{t4}, 5, v{vLANE}
    v_lshlrev_b32 v{vCOL4}, 2, v{t3}
    v_lshlrev_b32 v{t5}, 4, v{t4}
    v_lshl_add_u32 v{t5}, v{t3}, 7, v{t5}
    s_lshr_b32 s{sU+3}, s{sW}, 2
    s_lshl_b32 s{sU+3}, s{sU+3}, 5
    s_add_u32 s{sU+3}, s{sU+3}, s{sNB}
    s_lshl_b32 s{sU+3}, s{sU+3}, 7
    """)
    for s in range(4):
        a(f"buffer_load_dwordx4 {vr(vQA+4*s,4)}, v{t5}, s[{sX}:{sX+3}], s{sU+3} offen offset:{32*s}")
    a(f"""
    v_lshlrev_b32 v{t5}, 1, v{t3}
    s_and_b32 s{sU+4}, s{sW}, 3
    s_lshl_b32 s{sU+5}, s{sU+4}, 6
    buffer_load_ushort v{vR}, v{t5}, s[{sB1}:{sB1+3}], s{sU+5} offen
    v_lshlrev_b32 v{t5}, 7, v0
    s_lshr_b32 s{sU+5}, s2, 3
    s_mul_i32 s{sU+5}, s{sU+5}, {313*128}
    s_movk_i32 s{sU+6}, 313
    v_cmp_gt_u32 vcc, s{sU+6}, v0
    v_mov_b32 v{vR+1}, 0x40000000
    s_nop 0
    v_cndmask_b32 v{t5}, v{vR+1}, v{t5}, vcc
    buffer_load_dword v{vR+1}, v{t5}, s[{sX}:{sX+3}], s{sU+5} offen
    v_lshlrev_b32 v{t5}, 4, v0
    v_mov_b32 v{vD[0]}, {hex(DUMMY_S)}
    v_mov_b32 v{vD[0]+1}, {hex(DUMMY_S)}
    v_mov_b32 v{vD[0]+2}, {hex(DUMMY_S)}
    v_mov_b32 v{vD[0]+3}, {hex(DUMMY_S)}
    v_mov_b32 v{vD[0]+4}, {hex(DUMMY_E)}
    v_mov_b32 v{vD[0]+5}, {hex(DUMMY_E)}
    v_mov_b32 v{vD[0]+6}, {hex(DUMMY_E)}
    v_mov_b32 v{vD[0]+7}, {hex(DUMMY_E)}
    v_mov_b32 v{vD[0]+8}, 0
    v_mov_b32 v{vD[0]+9}, 0
    v_mov_b32 v{vD[0]+10}, 0
    v_mov_b32 v{vD[0]+11}, 0
    v_add_u32 v{vS}, {SRCL}, v{t5}
    ds_write_b128 v{vS}, {vr(vD[0],4)}
    ds_write_b128 v{vS}, {vr(vD[0],4)} offset:8192
    ds_write_b128 v{vS}, {vr(vD[0]+4,4)} offset:16384
    ds_write_b128 v{vS}, {vr(vD[0]+4,4)} offset:24576
    s_cmp_lg_u32 s{sW}, 0
    s_cbranch_scc1 K2_init2
    v_lshlrev_b32 v{vS+1}, 2, v{vLANE}
    v_add_u32 v{vS+1}, {HIST}, v{vS+1}
    ds_write_b32 v{vS+1}, v{vD[0]+8}
    v_lshlrev_b32 v{vS+2}, 3, v{vLANE}
    ds_write_b64 v{vS+2}, {vr(vD[0]+8,2)} offset:{QOFF+40*RS}
    s_cmp_eq_u32 s{sFIRST}, 0
    s_cbranch_scc1 K2_init2
    ds_write_b32 v{vS+1}, v{vD[0]+8} offset:{CNTT-HIST}
    ds_write_b32 v{vS+1}, v{vD[0]+8} offset:{MISC-HIST-192}
K2_init2:
    s_cmp_eq_u32 s{sFIRST}, 0
    s_cbranch_scc1 K2_init3
    ds_write_b128 v{t5}, {vr(vD[0]+8,4)} offset:{AGG}
    ds_write_b128 v{t5}, {vr(vD[0]+8,4)} offset:{AGG+8192}
    ds_write_b128 v{t5}, {vr(vD[0]+8,4)} offset:{AGG+16384}
    ds_write_b128 v{t5}, {vr(vD[0]+8,4)} offset:{AGG+24576}
    ds_write_b128 v{t5}, {vr(vD[0]+8,4)} offset:{AGG+32768}
    s_movk_i32 s{sU+6}, {(SRCL-AGG-40960)//16}
    v_cmp_gt_u32 vcc, s{sU+6}, v0
    s_and_saveexec_b64 s[{sU+8}:{sU+9}], vcc
    ds_write_b128 v{t5}, {vr(vD[0]+8,4)} offset:{AGG+40960}
    s_mov_b64 exec, -1
K2_init3:
    v_lshrrev_b32 v{vS}, 4, v{vLANE}
    v_and_b32 v{vS}, 1, v{vS}                     ; (l>>4)&1
    v_lshl_or_b32 v{vS+1}, v{t4}, 2, v{vS}        ; 4*(l>>5)+((l>>4)&1)
    v_and_b32 v{vS+2}, 7, v{vLANE}
    v_xor_b32 v{vXC0}, v{vS+1}, v{vS+2}
    v_lshlrev_b32 v{vXC0}, 4, v{vXC0}
    v_xor_b32 v{vXC1}, 32, v{vXC0}
    v_and_b32 v{vEC}, 1, v{vLANE}
    v_xor_b32 v{vEC}, v{vEC}, v{vS}
    v_lshlrev_b32 v{vEC}, 4, v{vEC}
    ; m = l&31 ; j = 16*((m>>2)&1) + 8*(m&1) + 2*(m>>3) + ((m>>1)&1)
    v_bfe_u32 v{vS}, v{t3}, 2, 1                  ; hm
    v_and_b32 v{vS+1}, 1, v{t3}                   ; xy
    v_lshrrev_b32 v{vS+2}, 3, v{t3}               ; m>>3
    v_bfe_u32 v{vS+3}, v{t3}, 1, 1
    v_lshl_add_u32 v{vS+2}, v{vS+2}, 1, v{vS+3}   ; p
    v_lshl_add_u32 v{vS+3}, v{vS}, 1, v{vS+1}     ; seg
    v_lshl_add_u32 v{vS+3}, v{vS+3}, 3, v{vS+2}   ; j
    v_xor_b32 v{vAE}, v{t4}, v{vS+1}
    v_lshlrev_b32 v{vAE}, 4, v{vAE}
    v_lshl_add_u32 v{vAE}, v{vS+3}, 5, v{vAE}
    v_add_u32 v{vAE}, s{sME}, v{vAE}
    v_and_b32 v{vEO}, 3, v{vS+3}
    v_lshrrev_b32 v{vS+3}, 2, v{vS+3}
    v_lshl_add_u32 v{vS+3}, v{vEO}, 3, v{vS+3}
    v_lshlrev_b32 v{vS+3}, 7, v{vS+3}
    v_add_u32 v{vS+3}, s{sMX}, v{vS+3}
    v_and_b32 v{vEO}, 7, v{t3}
    v_xor_b32 v{vEO}, v{vEO}, v{t4}
    v_lshl_add_u32 v{vAX}, v{vEO}, 4, v{vS+3}
    v_xor_b32 v{vAX+1}, 32, v{vAX}
    v_xor_b32 v{vAX+2}, 64, v{vAX}
    v_xor_b32 v{vAX+3}, 0x60, v{vAX}
    v_cmp_eq_u32 vcc, v{vS}, v{t4}
    v_mov_b32 v{vAQ}, 0x3f803f80
    s_nop 0
    v_cndmask_b32 v{vAQ}, 0, v{vAQ}, vcc
    v_cmp_eq_u32 vcc, 1, v{vS+1}
    s_nop 1
    v_cndmask_b32 v{vAQ+1}, 0, v{vAQ}, vcc
    v_cndmask_b32 v{vAQ}, v{vAQ}, 0, vcc
    s_lshl_b32 s{sU+6}, s{sW}, 7
    s_add_u32 s{sU+6}, s{sU+6}, {SRCL}
    v_lshrrev_b32 v{vPS}, 3, v{vLANE}
    v_lshl_add_u32 v{vPS}, v{vPS}, 4, s{sU+6}
    v_lshrrev_b32 v{vPE}, 1, v{vLANE}
    v_lshl_add_u32 v{vPE}, v{vPE}, 2, s{sU+6}
    v_lshl_add_u32 v{vPN}, v{t4}, 6, s{sU+6}
    ; ---- records
    v_and_b32 v{t1}, 3, v{vLANE}
    v_lshlrev_b32 v{t1}, 2, v{t1}                 ; 4q
    v_add_u32 v{t1}, s{sR32}, v{t1}               ; 4q + r32
    s_movk_i32 s{sU+7}, {CH}
    v_mul_u32_u24 v{vOF+6}, s{sU+7}, v{t0}
    v_add_u32 v{vOF+7}, {16*CH}, v{vOF+6}
    s_movk_i32 s{sU+7}, {CHS//4}
    v_mad_u32_u24 v{vOF+4}, v{t0}, s{sU+7}, v{t1}
    v_add_u32 v{vOF+5}, {16*CHS//4}, v{vOF+4}
    s_waitcnt vmcnt(13)
    """)
    stamp(a, opt, 1)
    for i in range(2):
        a(f"""
        v_lshrrev_b32 v{vOF+2+i}, 16, v{vOF+i}
        v_and_b32 v{vOF+i}, 0xffff, v{vOF+i}
        v_add_lshl_u32 v{vOF+4+i}, v{vOF+4+i}, v{vOF+i}, 2
        """)
    a(f"""
    v_mov_b32 v{vOF}, v{vOF+2}
    v_mov_b32 v{vOF+1}, v{vOF+3}
    s_cmp_eq_u32 s{sMODE}, 0
    s_cbranch_scc1 K2_cnt_ok
    s_lshr_b32 s{sU+7}, s{sW}, 1
    s_cmp_eq_u32 s{sU+7}, s{sGRP}
    s_cbranch_scc1 K2_cnt_ok
    v_mov_b32 v{vOF+2}, 0
    v_mov_b32 v{vOF+3}, 0
K2_cnt_ok:
    v_sub_u32 v{vOF+2}, v{vOF+2}, v{t1}
    v_sub_u32 v{vOF+3}, v{vOF+3}, v{t1}
    v_mov_b32 v{t5}, 0x40000000
    """)
    def mk(sec, i, u):
        n = 8 * sec + 4 * i + u
        return f"s[{sMK+2*n}:{sMK+2*n+1}]"
    for sec in range(2):
        for i in range(2):
            a(f"v_cmp_lt_i32 {mk(sec,i,0)}, {16*sec}, v{vOF+2+i}")
    a("s_nop 1")
    for sec in range(2):
        for i in range(2):
            a(f"v_cndmask_b32 v{vS+2*sec+i}, v{t5}, v{vOF+4+i}, {mk(sec,i,0)}")
    for sec in range(2):
        for i in range(2):
            a(f"buffer_load_dwordx4 {vr(vREC+8*sec+4*i,4)}, v{vS+2*sec+i}, s[{sWS}:{sWS+3}], 0 offen offset:{64*sec}")
    for sec in range(2):
        for i in range(2):
            for u in range(1, 4):
                a(f"v_cmp_lt_i32 {mk(sec,i,u)}, {16*sec+u}, v{vOF+2+i}")
    a(f"""
    s_waitcnt vmcnt(4) lgkmcnt(0)
    s_barrier
    v_lshlrev_b32 v{t2}, 4, v{vLANE}
    s_lshl_b32 s{sU+5}, s{sU+4}, 10
    v_add_u32 v{t2}, {XS}, v{t2}
    v_add_u32 v{t5}, s{sU+5}, v{t2}
    """)
    for s in range(4):
        a(f"ds_read_b128 {vr(vQB+4*s,4)}, v{t5} offset:{(16+4*s)*1024}")
    for kb in range(5):
        for ct in range(4):
            f = 4 * kb + ct if kb < 4 else 32 + ct
            a(f"ds_read_b128 {W(kb,ct)}, v{t2} offset:{f*1024}")
    a(f"""
    v_max_u32 v{vOF}, v{vOF}, v{vOF+1}
    v_mov_b32 v{vOF+1}, {MISC}
    s_cmp_eq_u32 s{sMODE}, 0
    s_cbranch_scc1 K2_fastchk
    ds_max_u32 v{vOF+1}, v{vOF} offset:4
    s_branch K2_chkdone
K2_fastchk:
    v_cmp_lt_u32 vcc, 32, v{vOF}
    s_and_saveexec_b64 s[{sU+8}:{sU+9}], vcc
    s_cbranch_execz K2_chknone
    v_mov_b32 v{vOF+1}, {HIST+252}
    v_mov_b32 v{vOF}, 0x100000
    ds_max_u32 v{vOF+1}, v{vOF}
K2_chknone:
    s_mov_b64 exec, -1
K2_chkdone:
    v_lshlrev_b32 v{vR}, 16, v{vR}
    v_mul_f32 v{vR}, {hex(LOG2E_NEG)}, v{vR}
    s_mov_b32 s{sU+6}, {hex(LOG2E_NEG)}
    s_waitcnt lgkmcnt(0)
    """)
    for s in range(4):
        c = "0" if s == 0 else vr(vQZ, 16)
        a(f"v_mfma_f32_32x32x16_bf16 {vr(vQZ,16)}, {vr(vQA+4*s,4)}, {vr(vQB+4*s,4)}, {c}")
    a(f"""
    s_lshr_b32 s{sU+7}, s{sW}, 2
    s_mul_i32 s{sU+7}, s{sU+7}, {32*RS}
    s_lshl_b32 s{sU+8}, s{sU+4}, 7
    s_add_u32 s{sU+7}, s{sU+7}, s{sU+8}
    s_movk_i32 s{sU+8}, {4*RS}
    v_mad_u32_u24 v{vCHK}, v{t4}, s{sU+8}, v{vCOL4}
    v_add_u32 v{vCHK}, s{sU+7}, v{vCHK}
    s_nop 7
    s_nop 3
    """)

    def qvals(rng):
        for r in rng:
            a(f"v_fma_f32 v{vQZ+r}, v{vQZ+r}, s{sU+6}, v{vR}")
        for r in rng:
            a(f"v_cvt_pk_bf16_f32 v{vQB+r}, v{vQZ+r}, v{vQZ+r}")
        for r in rng:
            a(f"v_and_b32 v{vQB+r}, 0xffff0000, v{vQB+r}")
        for r in rng:
            a(f"v_sub_f32 v{vQA+r}, v{vQZ+r}, v{vQB+r}")
        for r in rng:
            a(f"v_cvt_pk_bf16_f32 v{vQB+r}, v{vQB+r}, v{vQA+r}")
        for r in rng:
            a(f"ds_write_b32 v{vCHK}, v{vQB+r} offset:{QOFF+(8*(r>>2)+(r&3))*RS}")
    qvals(range(4))
    a(f"s_cmp_ge_u32 s{sW}, 4\ns_cbranch_scc1 K2_qdone")
    qvals(range(4, 16))
    a(f"""
K2_qdone:
    v_mov_b32 v{t5}, 4
    v_mov_b32 v{t2}, {HIST}
    s_waitcnt vmcnt(0)
    """)
    stamp(a, opt, 2)

    def slot1(sec, i, u):
        n = 8 * sec + 4 * i + u
        a(f"""
        v_and_b32_sdwa v{vHA+n}, v{vREC+n}, s{sCFC} dst_sel:DWORD dst_unused:UNUSED_PAD src0_sel:BYTE_3 src1_sel:DWORD
        v_and_b32 v{vEID+8+n}, 0xfff, v{vREC+n}
        v_add_u32 v{t0}, v{vHA+n}, v{t2}
        v_bfe_u32 v{vREC+n}, v{vREC+n}, 12, 14
        ds_add_rtn_u32 v{vRK+n}, v{t0}, v{t5}
        v_add_u32 v{vEID+8+n}, v{vEID+8+n}, v{vOF+6+i}
        v_mad_u32_u24 v{vREC+n}, v{vHA+n}, s{sC33}, v{vREC+n}
        """)
    for i in range(2):
        for u in range(4):
            a(f"s_mov_b64 exec, {mk(0,i,u)}")
            slot1(0, i, u)
    for i in range(2):
        for u in range(4):
            a(f"s_mov_b64 exec, {mk(1,i,u)}\ns_cbranch_execz K2_s1skip{i}")
            slot1(1, i, u)
        a(f"K2_s1skip{i}:")
    a(f"""
    s_mov_b64 exec, -1
    v_lshlrev_b32 v{vS}, 2, v{vLANE}
    v_add_u32 v{vS}, {HIST}, v{vS}
    s_waitcnt lgkmcnt(0)
    s_barrier
    ds_read_b32 v{vS+1}, v{vS}
    s_waitcnt lgkmcnt(0)
    v_add_u32 v{vS+2}, 28, v{vS+1}
    v_and_b32 v{vS+2}, -32, v{vS+2}
    v_mov_b32 v{vS+3}, v{vS+2}
    """)
    scan64(a, vS + 3)
    a(f"""
    v_sub_u32 v{vEO}, v{vS+2}, v{vS+1}
    v_readlane_b32 s{sNT}, v{vS+3}, 63
    v_sub_u32 v{vS+3}, v{vS+3}, v{vS+2}
    v_add_u32 v{vS+3}, {SRCL}, v{vS+3}
    v_cvt_f32_u32 v{vEO}, v{vEO}
    v_mul_f32 v{vEO}, -0.5, v{vEO}
    v_mul_f32 v{vEO}, 0.5, v{vEO}
    s_cmp_gt_u32 s{sNT}, {CAPP*4}
    s_cbranch_scc1 K2_togeneral
    ds_write_b32 v{vS}, v{vEO} offset:{NPAD-HIST}
    s_cmp_lg_u32 s{sW}, 0
    s_cbranch_scc1 K2_nocnt
    ds_add_u32 v{vS}, v{vS+1} offset:{CNTT-HIST}
K2_nocnt:
    s_add_u32 s{sNT}, s{sNT}, 124
    s_lshr_b32 s{sNT}, s{sNT}, 7
    s_add_u32 s{sNT}, s{sNT}, 7
    s_sub_u32 s{sNT}, s{sNT}, s{sW}
    s_lshr_b32 s{sNT}, s{sNT}, 3
    """)
    for n in range(8):
        a(f"ds_bpermute_b32 v{vHA+n}, v{vHA+n}, v{vS+3}")
    for n in range(8):
        a(f"s_waitcnt lgkmcnt({7-n})\nv_add_u32 v{vRK+n}, v{vRK+n}, v{vHA+n}")
    for n in range(8):
        a(f"s_mov_b64 exec, s[{sMK+2*n}:{sMK+2*n+1}]")
        a(f"ds_write2st64_b32 v{vRK+n}, v{vREC+n}, v{vEID+8+n} offset0:0 offset1:{(ELST-SRCL)//256}")
    for i in range(2):
        a(f"s_cmp_eq_u64 {mk(1,i,0)}, 0\ns_cbranch_scc1 K2_s2skip{i}\ns_mov_b64 exec, -1")
        for u in range(4):
            n = 8 + 4 * i + u
            a(f"ds_bpermute_b32 v{vHA+n}, v{vHA+n}, v{vS+3}")
        a("s_waitcnt lgkmcnt(0)")
        for u in range(4):
            n = 8 + 4 * i + u
            a(f"""
            s_mov_b64 exec, {mk(1,i,u)}
            v_add_u32 v{vRK+n}, v{vRK+n}, v{vHA+n}
            ds_write2st64_b32 v{vRK+n}, v{vREC+n}, v{vEID+8+n} offset0:0 offset1:{(ELST-SRCL)//256}
            """)
        a(f"K2_s2skip{i}:")
    a(f"""
    s_mov_b64 exec, -1
    s_waitcnt lgkmcnt(0)
    s_barrier
    """)
    stamp(a, opt, 3)
    a(f"""
    ds_read_b128 {vr(vS,4)}, v{vPS}
    ds_read_b32 v{vEO}, v{vPE} offset:{ELST-SRCL}
    ds_read_b32 v{vBQ}, v{vPE} offset:{ELST-SRCL+1024}
    ds_read_b32 v{vNR}, v{vPN}
    ds_read_b32 v{vNR+1}, v{vPN} offset:32
    v_lshrrev_b32 v{t4}, 5, v{vLANE}
    s_lshr_b32 s{sU+7}, s{sW}, 2
    s_lshl_b32 s{sU+7}, s{sU+7}, 7
    s_add_u32 s{sU+7}, s{sU+7}, {NPAD}
    v_lshl_add_u32 v{t0}, v{t4}, 4, s{sU+7}
    s_waitcnt lgkmcnt(3)
    """)
    for l in x_offs():
        a(l)
    a(e_off())
    for i in range(4):
        a(dma_x(i)[0] + "\ns_nop 0\n" + dma_x(i)[1])
    a(dma_e(0, opt)[0] + "\ns_nop 0\n" + dma_e(0, opt)[1])
    a(f"""
    s_waitcnt lgkmcnt(2)
    v_lshl_add_u32 v{vEO}, v{vBQ}, 5, v{vEC}
    """)
    a(dma_e(1, opt)[0] + "\ns_nop 0\n" + dma_e(1, opt)[1])
    a(f"""
    ds_read_b128 {vr(vS,4)}, v{vPS} offset:1024
    ds_read_b32 v{vEO}, v{vPE} offset:{ELST-SRCL+2048}
    v_lshlrev_b32 v{vCOL8}, 1, v{vCOL4}
    s_lshr_b32 s{sU+7}, s{sW}, 2
    s_mul_i32 s{sU+7}, s{sU+7}, {32*RA}
    s_and_b32 s{sU+8}, s{sW}, 3
    s_lshl_b32 s{sU+8}, s{sU+8}, 8
    s_add_u32 s{sU+7}, s{sU+7}, s{sU+8}
    s_movk_i32 s{sU+8}, {4*RA}
    v_mad_u32_u24 v{vCA}, v{t4}, s{sU+8}, v{vCOL8}
    v_add_u32 v{vCA}, s{sU+7}, v{vCA}
    """)
    for g in range(4):
        a(f"ds_read_b128 {vr(vD[0]+4*g,4)}, v{t0} offset:{32*g}")

    def corr(rng):
        for r in rng:
            a(f"v_exp_f32 v{vE+r}, v{vQZ+r}")
        for r in rng:
            a(f"v_add_f32 v{vE+r}, 1.0, v{vE+r}")
        for r in rng:
            a(f"v_rcp_f32 v{vE+r}, v{vE+r}")
        a("s_waitcnt lgkmcnt(0)")
        for r in rng:
            a(f"v_mul_f32 v{vE+r}, v{vE+r}, v{vQZ+r}")
        for r in rng:
            a(f"v_mul_legacy_f32 v{vE+r}, v{vE+r}, v{vD[0]+r}")
        for r in rng:
            a(f"v_cvt_f64_f32 {vr(vA+2*(r%8),2)}, v{vE+r}")
            a(f"ds_add_f64 v{vCA}, {vr(vA+2*(r%8),2)} offset:{AGG+(8*(r>>2)+(r&3))*RA}")
            if r == 7:
                a("s_waitcnt lgkmcnt(0)")
    corr(range(4))
    a(f"s_cmp_ge_u32 s{sW}, 4\ns_cbranch_scc1 K2_cdone")
    corr(range(4, 16))
    a(f"""
K2_cdone:
    {q_addr(0)}
    {q_addr(1)}
    """)
    for l in x_offs():
        a(l)
    a(e_off())
    a(f"""
    v_add_u32 v{vNA}, {40*RA}, v{vCOL8}
    v_add_u32 v{vNA+1}, {40*RA}, v{vCOL8}
    v_mov_b32 v{vR}, 0
    v_mov_b32 v{vR+1}, 0
    v_mov_b32 v{vT}, 0
    v_mov_b32 v{vT+1}, 0
    v_mov_b32 v{vM0}, 1.0
    v_mov_b32 v{vM0+1}, 1.0
    s_waitcnt lgkmcnt(0)
    v_mov_b32 v{vCHK}, 1.0
    s_cmp_eq_u32 s{sNT}, 0
    s_cbranch_scc1 K2_loop_done
    ds_read_b32 v{vBQ}, v{vNQ} offset:{QOFF}
    ds_read_b32 v{vBQ+1}, v{vNQ+1} offset:{QOFF}
    s_waitcnt vmcnt(1)
    """)
    stamp(a, opt, 4)
    stamp(a, opt, 7, clk=True)
    if opt.get("stamp"):
        a("s_waitcnt vmcnt(0)")
    for l in a_reads(0):
        a(l)
    a("s_waitcnt lgkmcnt(0)")
    mf = mfmas(vD[0], 0)
    for i in range(4):
        a(dma_x(i)[0] + "\n" + mf[i] + "\n" + dma_x(i)[1])
    a(dma_e(0, opt)[0] + "\n" + mf[4] + "\n" + dma_e(0, opt)[1])
    a(mf[5])
    a(f"""
    s_nop 7
    s_cmp_eq_u32 s{sMODE}, 0
    s_cbranch_scc0 K2_loopD
    """)
    main_loop(a, False, opt)
    main_loop(a, True, opt)
    a(f"""
K2_loop_done:
    s_mov_b32 s{sU}, 0x7b800000
    v_cmp_le_f32 vcc, s{sU}, v{vCHK}
    v_mov_b32 v{t0}, {MISC}
    v_mov_b32 v{t1}, 1
    s_and_saveexec_b64 s[{sU+8}:{sU+9}], vcc
    s_cbranch_execz K2_noflag
    ds_write_b32 v{t0}, v{t1}
K2_noflag:
    s_mov_b64 exec, -1
    v_and_b32 v{t2}, 15, v{vLANE}
    v_lshrrev_b32 v{t3}, 4, v{vLANE}
    s_and_b32 s{sU+1}, s{sW}, 1
    s_lshr_b32 s{sU+2}, s{sW}, 1
    s_lshl_b32 s{sU+3}, s{sU+1}, 6
    v_lshlrev_b32 v{t4}, 3, v{t3}
    buffer_load_dwordx2 {vr(vB2,2)}, v{t4}, s[{sB2}:{sB2+3}], s{sU+3} offen
    buffer_load_dwordx2 {vr(vB2+2,2)}, v{t4}, s[{sB2}:{sB2+3}], s{sU+3} offen offset:32
    s_lshl_b32 s{sU+3}, s{sU+1}, 13
    s_add_u32 s{sU+3}, s{sU+3}, {W2L}
    v_lshl_add_u32 v{t5}, v{vLANE}, 4, s{sU+3}
    """)
    for o in range(2):
        for s in range(4):
            a(f"ds_read_b128 {vr(vE-32+16*o+4*s,4)}, v{t5} offset:{(4*o+s)*1024}")
    stamp(a, opt, 8, clk=True)
    stamp(a, opt, 5)
    a(f"""
    s_waitcnt vmcnt(0) lgkmcnt(0)
    s_barrier
    s_cmp_eq_u32 s{sMODE}, 0
    s_cbranch_scc1 K2_epi
    ds_read_b32 v{t1}, v{t0} offset:4
    s_add_u32 s{sGRP}, s{sGRP}, 1
    s_mov_b32 s{sFIRST}, 0
    s_waitcnt lgkmcnt(0)
    v_readfirstlane_b32 s{sU+4}, v{t1}
    s_cmp_lt_u32 s{sGRP}, 4
    s_cbranch_scc1 K2_rebatch
    s_mov_b32 s{sGRP}, 0
    s_add_u32 s{sR32}, s{sR32}, 32
    s_cmp_lt_u32 s{sR32}, s{sU+4}
    s_cbranch_scc1 K2_rebatch
K2_epi:
    s_cmp_ge_u32 s{sW}, 6
    s_cbranch_scc1 K2_epi_done
    s_lshl_b32 s{sU+4}, s{sU+2}, 4
    v_add_u32 v{t2}, s{sU+4}, v{t2}
    v_lshlrev_b32 v{t5}, 6, v{t3}
    v_mad_u32_u24 v{t5}, v{t2}, s{sCRA}, v{t5}
    v_lshlrev_b32 v{t4}, 2, v{t2}
    v_add_u32 v{t4}, {CNTT}, v{t4}
    ds_read_b32 v{t1}, v{t4}
    """)
    vG = [24, 40, 88, 104]
    for s in range(4):
        if s == 3:
            a("s_waitcnt lgkmcnt(8)")
        for u in range(4):
            a(f"ds_read_b128 {vr(vG[s]+4*u,4)}, v{t5} offset:{AGG+256*s+16*u}")
    a(f"""
    v_lshlrev_b32 v{t4}, 3, v{t3}
    v_lshl_add_u32 v{t4}, v{t2}, 7, v{t4}
    s_lshl_b32 s{sU+5}, s{sNB}, 7
    s_lshl_b32 s{sU+6}, s{sU+1}, 6
    s_add_u32 s{sU+5}, s{sU+5}, s{sU+6}
    v_lshlrev_b32 v2, 16, v{vB2}
    v_and_b32 v3, 0xffff0000, v{vB2}
    v_lshlrev_b32 v4, 16, v{vB2+1}
    v_and_b32 v5, 0xffff0000, v{vB2+1}
    v_lshlrev_b32 v6, 16, v{vB2+2}
    v_and_b32 v7, 0xffff0000, v{vB2+2}
    v_lshlrev_b32 v8, 16, v{vB2+3}
    v_and_b32 v9, 0xffff0000, v{vB2+3}
    """)
    for s in range(4):
        a(f"s_waitcnt lgkmcnt({12-4*s})")
        for j in range(8):
            a(f"v_cvt_f32_f64 v{vG[s]+j}, {vr(vG[s]+2*j,2)}")
        for j in range(4):
            a(f"v_cvt_pk_bf16_f32 v{vG[s]+j}, v{vG[s]+2*j}, v{vG[s]+2*j+1}")
    a(f"""
    v_cvt_f32_u32 v{t1}, v{t1}
    v_mul_f32 v{t1}, 0.5, v{t1}
    v_mul_f32 v{t1}, 0.5, v{t1}
    """)
    for s in range(4):
        for o in range(2):
            c = "0" if s == 0 else vr(12 + 4 * o, 4)
            a(f"v_mfma_f32_16x16x32_bf16 {vr(12+4*o,4)}, {vr(vE-32+16*o+4*s,4)}, {vr(vG[s],4)}, {c}")
    for j in range(8):
        a(f"v_mul_f32 v{2+j}, v{t1}, v{2+j}")
    a(f"""
    s_mov_b32 s{sU+6}, {hex(LN2_NEG)}
    v_cmp_gt_u32 vcc, s{sNN}, v{t2}
    s_nop 0
    s_and_saveexec_b64 s[{sU+8}:{sU+9}], vcc
    s_cbranch_execz K2_epi_done
    """)
    for j in range(8):
        a(f"v_fma_f32 v{2+j}, v{12+j}, s{sU+6}, v{2+j}")
    for j in range(4):
        a(f"v_cvt_pk_bf16_f32 v{24+j}, v{2+2*j}, v{3+2*j}")
    a(f"""
    buffer_store_dwordx2 v[24:25], v{t4}, s[{sO}:{sO+3}], s{sU+5} offen
    buffer_store_dwordx2 v[26:27], v{t4}, s[{sO}:{sO+3}], s{sU+5} offen offset:32
    v_sub_f32 v2, v2, v2
    """)
    for j in range(1, 8):
        a(f"v_fma_f32 v2, v{2+j}, 0, v2")
    a(f"""
    v_cmp_u_f32 vcc, v2, v2
    v_mov_b32 v{t1}, 1
    s_and_b64 exec, exec, vcc
    s_cbranch_execz K2_epi_done
    ds_write_b32 v{t0}, v{t1}
K2_epi_done:
    s_mov_b64 exec, -1
    """)
    stamp(a, opt, 6)
    a(f"""
    s_cmp_lg_u32 s{sMODE}, 0
    s_cbranch_scc1 K2_end
    s_waitcnt lgkmcnt(0)
    s_barrier
    ds_read_b32 v{t1}, v{t0}
    s_waitcnt lgkmcnt(0)
    v_readfirstlane_b32 s{sU+4}, v{t1}
    s_cmp_eq_u32 s{sU+4}, 0
    s_cbranch_scc1 K2_end
K2_togeneral:
    s_mov_b32 s{sMODE}, 1
    s_mov_b32 s{sR32}, 0
    s_mov_b32 s{sGRP}, 0
    s_mov_b32 s{sFIRST}, 1
K2_rebatch:
    s_waitcnt vmcnt(0) lgkmcnt(0)
    s_barrier
    s_branch K2_batch
K2_end:
    s_endpgm
    """)


HDR = """; Edge-featured MPNN: K1 buckets the edges by destination range, K2 sorts each bucket by
; @launch kernel=mpnn_bucket_kernel grid=(256,1,1) block=(704,1,1) lds=12288
; @launch kernel=mpnn_edge_kernel grid=(256,1,1) block=(512,1,1) lds={lds2}
.amdgcn_target "amdgcn-amd-amdhsa--gfx950"
.text
"""


def kd(name, vgpr, sgpr, accum):
    return f""".amdhsa_kernel {name}
  .amdhsa_next_free_vgpr {vgpr}
  .amdhsa_next_free_sgpr {sgpr}
  .amdhsa_accum_offset {accum}
  .amdhsa_group_segment_fixed_size 0
  .amdhsa_kernarg_size 88
  .amdhsa_user_sgpr_count 2
  .amdhsa_user_sgpr_kernarg_segment_ptr 1
  .amdhsa_system_sgpr_workgroup_id_x 1
.end_amdhsa_kernel
"""


def generate(opt=None):
    opt = opt or {}
    out = HDR.format(lds2=LDS2)
    for name, fn in (("mpnn_bucket_kernel", gen_k1), ("mpnn_edge_kernel", gen_k2)):
        a = Asm()
        fn(a, opt)
        out += f".globl {name}\n.p2align 8\n.type {name},@function\n{name}:\n" + a.text()
    out += '.section .rodata,"a"\n.p2align 6\n'
    st = opt.get("stamp")
    out += kd("mpnn_bucket_kernel", 144 if st else 32, 102 if st else 40, 144 if st else 32)
    out += ".p2align 6\n"
    out += kd("mpnn_edge_kernel", 224, 102, 144)
    return out


if __name__ == "__main__":
    opt = {}
    for arg in sys.argv[2:]:
        k, v = arg.split("=")
        opt[k] = int(v) if v.lstrip("-").isdigit() else v
    open(sys.argv[1], "w").write(generate(opt))
```

```python
import sys, struct

N, E = 10000, 640000
NCH, CH = 256, 2500
CHS = 10240
REC = 0
OFF = NCH * CHS
WF = OFF + NCH * 1024
WSZ = WF + 52 * 1024
STAMP = 4 << 20
LOG2E_NEG = struct.unpack("<I", struct.pack("<f", -1.4426950408889634))[0]
LN2_NEG = struct.unpack("<I", struct.pack("<f", -0.6931471805599453))[0]

RS = 528
RA = 1040
QOFF = 0
AGG = 21760
SRCL = 64512
ELST = SRCL + 16384
XS = ELST + 16384
ES = XS + 32768
W2L = ES + 16384
HIST = W2L + 16384
CNTT = HIST + 256
NPAD = CNTT + 256
MISC = NPAD + 256
LDS2 = MISC + 64
CAPP = 3328
DUMMY_S = 0xFFFF | (40 << 16)
DUMMY_E = 0x00FFFFFF


class Asm:
    def __init__(self):
        self.L = []
        self.drop = ()

    def __call__(self, s):
        for line in s.strip("\n").split("\n"):
            line = line.strip()
            if not line:
                continue
            if any(line.startswith(d) for d in self.drop):
                continue
            self.L.append(line if line.endswith(":") or line.startswith(".") else "    " + line)

    def text(self):
        return "\n".join(self.L) + "\n"


def srd(a, d, lo, hi, size):
    a(f"s_mov_b32 s{d}, s{lo}\ns_and_b32 s{d+1}, s{hi}, 0xffff\ns_mov_b32 s{d+2}, {size}\ns_mov_b32 s{d+3}, 0x20000")


def scan64(a, v):
    for m in ("row_shr:1 row_mask:0xf", "row_shr:2 row_mask:0xf", "row_shr:4 row_mask:0xf", "row_shr:8 row_mask:0xf",
              "row_bcast:15 row_mask:0xa", "row_bcast:31 row_mask:0xc"):
        a(f"s_nop 1\nv_add_u32_dpp v{v}, v{v}, v{v} {m} bank_mask:0xf")


def stamp(a, opt, idx, sreg=96, clk=False):
    if not opt.get("stamp"):
        return
    if opt.get("dbg") and clk:
        return
    a(f"""
    {"s_memtime" if clk else "s_memrealtime"} s[{sreg}:{sreg+1}]
    s_waitcnt lgkmcnt(0)
    v_writelane_b32 v136, s{sreg}, {idx}
    """)


def stamp_flush(a, opt):
    if not opt.get("stamp"):
        return
    a(f"""
    s_mov_b64 exec, 0xffff
    v_mbcnt_lo_u32_b32 v137, -1, 0
    v_lshlrev_b32 v137, 2, v137
    v_add_u32 v137, s98, v137
    buffer_store_dword v136, v137, s[92:95], 0 offen
    s_mov_b64 exec, -1
    """)


def stamp_setup(a, opt, wsreg, kidx, wavereg):
    if not opt.get("stamp"):
        return
    a("v_mov_b32 v136, 0")
    if opt.get("dbg"):
        a(f"""
        s_load_dwordx2 s[92:93], s[0:1], 72
        s_waitcnt lgkmcnt(0)
        s_and_b32 s93, s93, 0xffff
        s_mov_b32 s94, 64
        s_mov_b32 s95, 0x20000
        s_lshl_b32 s98, s2, 4
        s_add_u32 s98, s98, s{wavereg}
        s_cmp_eq_u32 s98, {(opt.get("dbg")-1)*16}
        s_cselect_b32 s98, {kidx*32}, 0x1000
        """)
        return
    a(f"""
    s_add_u32 s92, s{wsreg}, {STAMP}
    s_addc_u32 s93, s{wsreg+1}, 0
    s_and_b32 s93, s93, 0xffff
    s_mov_b32 s94, {1<<20}
    s_mov_b32 s95, 0x20000
    s_add_u32 s98, s2, {kidx*256}
    s_lshl_b32 s98, s98, 4
    s_add_u32 s98, s98, s{wavereg}
    s_lshl_b32 s98, s98, 6
    """)


def gen_k1(a, opt):
    H1, ST1, SO1 = 0, 1024, 2048
    a(f"""
    s_cmp_ge_u32 s2, {NCH}
    s_cbranch_scc1 K1_end
    s_load_dwordx4 s[4:7], s[0:1], 16
    s_load_dwordx2 s[8:9], s[0:1], 80
    s_load_dwordx2 s[10:11], s[0:1], 32
    s_load_dwordx2 s[24:25], s[0:1], 48
    v_lshrrev_b32 v1, 6, v0
    v_lshlrev_b32 v2, 2, v0
    v_readfirstlane_b32 s3, v1
    v_mov_b32 v3, 0
    s_cmp_eq_u32 s3, 10
    s_cbranch_scc1 K1_prep
    s_cmp_ge_u32 s3, 4
    s_cbranch_scc1 K1_nozero
    ds_write_b32 v2, v3 offset:{H1}
K1_nozero:
    v_lshlrev_b32 v3, 4, v0
    s_mul_i32 s28, s2, {CH*4}
    s_mul_i32 s29, s2, {CHS}
    s_movk_i32 s30, 625
    v_cmp_gt_u32 vcc, s30, v0
    s_mov_b32 s31, 429497
    s_mov_b64 s[32:33], vcc
    s_waitcnt lgkmcnt(0)
    """)
    srd(a, 12, 4, 5, E * 4)
    srd(a, 16, 6, 7, E * 4)
    srd(a, 20, 8, 9, WSZ)
    stamp_setup(a, opt, 8, 0, 3)
    stamp(a, opt, 0)
    a(f"""
    s_mov_b64 exec, s[32:33]
    buffer_load_dwordx4 v[4:7], v3, s[16:19], s28 offen
    buffer_load_dwordx4 v[8:11], v3, s[12:15], s28 offen
    s_barrier
    v_mov_b32 v28, 1
    s_waitcnt vmcnt(1)
    """)
    for i in range(4):
        a(f"v_mul_u32_u24 v{12+i}, s31, v{4+i}")
    for i in range(4):
        a(f"v_lshrrev_b32 v{12+i}, 24, v{12+i}")
    for i in range(4):
        a(f"v_mad_u32_u24 v{16+i}, v{12+i}, s30, 15")
    for i in range(4):
        a(f"v_lshlrev_b32 v{12+i}, 2, v{12+i}")
    for i in range(4):
        a(f"ds_add_rtn_u32 v{20+i}, v{12+i}, v28 offset:{H1}")
    for i in range(4):
        a(f"v_lshrrev_b32 v{16+i}, 4, v{16+i}")
    for i in range(4):
        a(f"v_sub_u32 v{16+i}, v{4+i}, v{16+i}")
    for i in range(4):
        a(f"v_add_u32 v{24+i}, {i}, v2")
    for i in range(4):
        a(f"v_lshl_or_b32 v{16+i}, v{16+i}, 26, v{24+i}")
    a("s_waitcnt vmcnt(0)")
    for i in range(4):
        a(f"v_lshl_or_b32 v{16+i}, v{8+i}, 12, v{16+i}")
    stamp(a, opt, 1)
    a(f"""
    s_waitcnt lgkmcnt(0)
    s_barrier
    s_mov_b64 exec, -1
    v_and_b32 v29, 63, v0
    v_lshlrev_b32 v29, 4, v29
    ds_read_b128 v[4:7], v29 offset:{H1}
    s_waitcnt lgkmcnt(0)
    v_add_u32 v9, v4, v5
    v_add_u32 v10, v9, v6
    v_add_u32 v11, v10, v7
    v_mov_b32 v8, v11
    """)
    scan64(a, 8)
    a(f"""
    v_sub_u32 v24, v8, v11
    v_add_u32 v25, v24, v4
    v_add_u32 v26, v24, v9
    v_add_u32 v27, v24, v10
    ds_write_b128 v29, v[24:27] offset:{ST1}
    s_cmp_lg_u32 s3, 0
    s_cbranch_scc1 K1_nooff
    v_lshl_or_b32 v4, v4, 16, v24
    v_lshl_or_b32 v5, v5, 16, v25
    v_lshl_or_b32 v6, v6, 16, v26
    v_lshl_or_b32 v7, v7, 16, v27
    s_lshl_b32 s34, s2, 10
    s_add_u32 s34, s34, {OFF}
    buffer_store_dwordx4 v[4:7], v29, s[20:23], s34 offen
K1_nooff:
    s_mov_b64 exec, s[32:33]
    s_waitcnt lgkmcnt(0)
    """)
    for i in range(4):
        a(f"ds_read_b32 v{24+i}, v{12+i} offset:{ST1}")
    for i in range(4):
        a(f"s_waitcnt lgkmcnt({3-i})\nv_add_lshl_u32 v{24+i}, v{24+i}, v{20+i}, 2")
    for i in range(4):
        a(f"ds_write_b32 v{24+i}, v{16+i} offset:{SO1}")
    a(f"""
    s_waitcnt lgkmcnt(0)
    s_barrier
    ds_read_b128 v[4:7], v3 offset:{SO1}
    s_waitcnt lgkmcnt(0)
    buffer_store_dwordx4 v[4:7], v3, s[20:23], s29 offen
    """)
    stamp(a, opt, 2)
    stamp_flush(a, opt)
    a("""
    s_endpgm
K1_prep:
    s_cmp_ge_u32 s2, 52
    s_cbranch_scc1 K1_end
    v_and_b32 v1, 63, v0
    s_waitcnt lgkmcnt(0)
    """)
    srd(a, 20, 8, 9, WSZ)
    a(f"""
    s_cmp_ge_u32 s2, 36
    s_cbranch_scc1 K1_prep2
    """)
    srd(a, 12, 10, 11, 144 * 128 * 2)
    a(f"""
    s_lshr_b32 s28, s2, 2
    s_and_b32 s29, s2, 3
    s_lshl_b32 s30, s28, 12
    s_lshl_b32 s29, s29, 6
    s_add_u32 s30, s30, s29
    v_and_b32 v2, 31, v1
    v_lshrrev_b32 v3, 5, v1
    v_lshlrev_b32 v2, 1, v2
    v_lshl_add_u32 v2, v3, 11, v2
    s_and_b32 s28, s28, 12
    s_cmp_eq_u32 s28, 4
    s_cselect_b32 s31, 1.0, {hex(LOG2E_NEG)}
    """)
    for j in range(8):
        a(f"buffer_load_ushort v{4+j}, v2, s[12:15], s30 offen offset:{256*j}")
    a("""
    s_branch K1_prep3
K1_prep2:
    """)
    srd(a, 12, 24, 25, 128 * 64 * 2)
    a(f"""
    s_sub_u32 s28, s2, 36
    s_and_b32 s29, s28, 3
    s_lshr_b32 s28, s28, 2
    s_lshl_b32 s30, s29, 12
    s_lshl_b32 s28, s28, 5
    s_add_u32 s30, s30, s28
    v_and_b32 v2, 15, v1
    v_lshrrev_b32 v3, 4, v1
    v_lshlrev_b32 v2, 1, v2
    v_lshl_add_u32 v2, v3, 10, v2
    s_mov_b32 s31, 1.0
    """)
    for j in range(8):
        a(f"buffer_load_ushort v{4+j}, v2, s[12:15], s30 offen offset:{128*j}")
    a(f"""
K1_prep3:
    s_lshl_b32 s28, s2, 10
    s_add_u32 s28, s28, {WF}
    v_lshlrev_b32 v1, 4, v1
    s_barrier
    s_waitcnt vmcnt(0)
    """)
    for j in range(8):
        a(f"v_lshlrev_b32 v{4+j}, 16, v{4+j}")
    for j in range(8):
        a(f"v_mul_f32 v{4+j}, s31, v{4+j}")
    for j in range(4):
        a(f"v_cvt_pk_bf16_f32 v{12+j}, v{4+2*j}, v{5+2*j}")
    a("""
    buffer_store_dwordx4 v[12:15], v1, s[20:23], s28 offen
    s_barrier
    s_barrier
K1_end:
    s_endpgm
    """)


vLANE = 1
vXC0, vXC1, vEC, vCOL4 = 2, 3, 4, 5
vAX = 6
vAE = 10
vPS, vPE, vCOL8 = 11, 12, 13
vAQ = 14
vNA = 16
vN = [18, 20]
vEO, vCHK = 22, 23
vS = 24
vT, vM0, vM1, vR = 28, 30, 32, 34
vA = 36
vD = [56, 72]
vE = 88
vBQ = 104
vACC = 112
vF = 120
vT0 = 128
vQZ = 72
vREC, vHA, vRK, vEID, vOF = 88, 36, 52, 112, 104
vB2 = 20
aQA, aQB = 80, 96
sW = 3
sX, sE, sWS, sO, sB1, sB2 = 4, 8, 12, 16, 20, 24
sK, sNB, sNN, sMODE, sR32, sGRP, sFIRST, sNT = 28, 29, 30, 31, 32, 33, 34, 35
sMX = 36
sME = 40
sC128, sCFC, sC33 = 42, 43, 44
sT = 45
sMK = 48
sCH = 48
sU = 80
sCRS, sCRA = 99, 100
XST = XS + 36 * 1024


def W(kb, ct):
    b = (kb * 4 + ct) * 4
    return f"a[{b}:{b+3}]"


def vr(b, n):
    return f"v[{b}:{b+n-1}]"


def mfmas(dst, ct):
    L = []
    for kb in range(5):
        c = "0" if kb == 0 else vr(dst, 16)
        L.append(f"v_mfma_f32_32x32x16_bf16 {vr(dst,16)}, {vr(vA+4*kb,4)}, {W(kb,ct)}, {c}")
    L.append(f"v_mfma_f32_32x32x8_bf16 {vr(dst,16)}, {vr(vAQ,2)}, {vr(vBQ+2*ct,2)}, {vr(dst,16)}")
    return L


def a_reads(epar):
    L = [f"ds_read_b128 {vr(vA+4*s,4)}, v{vAX+s}" for s in range(4)]
    L.append(f"ds_read_b128 {vr(vA+16,4)}, v{vAE} offset:{epar*1024}")
    return L


def x_offs():
    return [f"v_mad_u32_u16 v{vS+i}, v{vS+i}, s{sC128}, v{vXC1 if i & 1 else vXC0}" for i in range(4)]


def n_update(par):
    xo = x_offs()
    return [f"v_mov_b32 v{vN[par]}, v{vS}", f"v_mov_b32 v{vN[par]+1}, v{vS}", xo[0], xo[1],
            f"v_permlane16_swap_b32 v{vN[par]}, v{vN[par]+1}", xo[2], xo[3]]


def e_off():
    return f"v_lshl_add_u32 v{vEO}, v{vEO}, 5, v{vEC}"


def q_load(par, i):
    L = [f"v_mad_u32_u16 v{vT0+i}, v{vN[par]+i}, s{sCRS}, v{vCOL4} op_sel:[1,0,0,0]"]
    L += [f"ds_read_b32 v{vBQ+2*ct+i}, v{vT0+i} offset:{QOFF+ct*128}" for ct in range(4)]
    return L


def a_addr(par, i):
    return f"v_mad_u32_u16 v{vNA+i}, v{vN[par]+i}, s{sCRA}, v{vCOL8} op_sel:[1,0,0,0]"


def flush(i):
    L = [f"v_cvt_f64_f32 {vr(vF+2*ct,2)}, v{vACC+2*ct+i}" for ct in range(4)]
    L += [f"ds_add_f64 v{vNA+i}, {vr(vF+2*ct,2)} offset:{AGG+ct*256}" for ct in range(4)]
    return L


def dma_x(i):
    return (f"s_mov_b32 m0, s{sMX+i}", f"buffer_load_dwordx4 v{vS+i}, s[{sX}:{sX+3}], 0 offen lds")


def dma_e(par, opt):
    return (f"s_mov_b32 m0, s{sME+par}", f"buffer_load_dwordx4 v{vEO}, s[{sE}:{sE+3}], 0 offen {opt.get('eflag','')} lds")


def clamp(srd_, size, k):
    return [f"s_cmp_gt_u32 s{sNT}, {k}", f"s_cselect_b32 s{srd_+2}, {size}, 0"]


def accum(ct, direct):
    acc = vr(vACC + 2 * ct, 2)
    if direct:
        return f"v_pk_add_f32 {acc}, {acc}, {vr(vT,2)}"
    return f"v_pk_fma_f32 {acc}, {vr(vR,2)}, {vr(vT,2)}, {acc}"


def p_phase(cur, ctp, direct):
    L = [accum(ctp, direct)]
    if direct:
        for i in range(8):
            e = vr(vE + 2 * i, 2)
            z = vr(cur + 2 * i, 2)
            L.append(f"v_pk_add_f32 {e}, {e}, 1.0 op_sel_hi:[1,0]")
            L.append(f"v_rcp_f32 v{vE+2*i}, v{vE+2*i}")
            L.append(f"v_rcp_f32 v{vE+2*i+1}, v{vE+2*i+1}")
            L.append("s_nop 0")
            if i == 0:
                L.append(f"v_pk_mul_f32 {vr(vT,2)}, {z}, {e}")
            else:
                L.append(f"v_pk_fma_f32 {vr(vT,2)}, {z}, {e}, {vr(vT,2)}")
        return L
    L.append(f"v_pk_add_f32 {vr(vM1,2)}, {vr(vE,2)}, 1.0 op_sel_hi:[1,0]")
    mc, mn = vM1, vM0
    for i in range(1, 8):
        e = vr(vE + 2 * i, 2)
        ts = vr(cur, 2) if i == 1 else vr(vT, 2)
        L.append(f"v_pk_fma_f32 {vr(vT,2)}, {ts}, {e}, {ts}")
        L.append(f"v_pk_fma_f32 {vr(mn,2)}, {vr(mc,2)}, {e}, {vr(mc,2)}")
        L.append(f"v_pk_fma_f32 {vr(vT,2)}, {vr(cur+2*i,2)}, {vr(mc,2)}, {vr(vT,2)}")
        mc, mn = mn, mc
    assert mc == vM0
    return L


def step(a, par, c, direct, opt, tag):
    XSZ = 0 if opt.get("nox") else N * 128
    ESZ = 0 if opt.get("noe") else E * 32
    cur, nxt = vD[c & 1], vD[(c + 1) & 1]
    mf = mfmas(nxt, (c + 1) & 3)
    tr = [f"v_exp_f32 v{vE+i}, v{cur+i}" for i in range(16)]
    if not direct:
        tr = [f"v_rcp_f32 v{vR}, v{vM0}", f"v_rcp_f32 v{vR+1}, v{vM0+1}"] + tr
    else:
        tr = ["s_nop 0", "s_nop 0"] + tr
    any_chg = f"s_or_b64 s[{sCH+4}:{sCH+5}], s[{sCH}:{sCH+1}], s[{sCH+2}:{sCH+3}]"
    slot = [[] for _ in range(6)]
    late = [[] for _ in range(6)]
    tail = []
    o = par * 32
    if c == 0:
        slot[0] = [f"ds_read_b128 {vr(vS,4)}, v{vPS} offset:{o+64}"]
        slot[1] = [f"ds_read_b32 v{vEO}, v{vPE} offset:{ELST-SRCL+o+96}"]
        cx, ce = clamp(sX, XSZ, 2), clamp(sE, ESZ, 3)
        slot[2], slot[3], slot[4], slot[5] = [cx[0]], [cx[1]], [ce[0]], [ce[1]]
        if par == 1:
            tail += [f"v_add_u32 v{p}, 64, v{p}" for p in (vPS, vPE)]
    if c == 1:
        a(f"{any_chg}\ns_cbranch_scc1 K2_fl{tag}{par}\nK2_flr{tag}{par}:")
    if c == 2:
        slot[4] = ["s_waitcnt lgkmcnt(0)"]
        slot[5] = ["s_waitcnt vmcnt(1)"] + a_reads(par ^ 1)
        for i in range(2):
            tail.append(f"v_cmp_ne_u32_sdwa s[{sCH+2*i}:{sCH+2*i+1}], v{vN[0]+i}, v{vN[1]+i} src0_sel:WORD_1 src1_sel:WORD_1")
        tail += n_update(par)
        tail += [any_chg, f"s_cbranch_scc1 K2_ql{tag}{par}", f"K2_qlr{tag}{par}:"]
    if c == 3:
        a("s_waitcnt lgkmcnt(0)")
        for i in range(4):
            slot[i], late[i] = [dma_x(i)[0]], [dma_x(i)[1]]
        late[3].append(e_off())
        slot[4], late[4] = [dma_e(par ^ 1, opt)[0]], [dma_e(par ^ 1, opt)[1]]
        slot[5] = [f"s_sub_u32 s{sNT}, s{sNT}, 1"]
        late[5] = [f"s_cmp_eq_u32 s{sNT}, 0"]
    for g in range(6):
        a(mf[g])
        for l in slot[g]:
            a(l)
        a(tr[3 * g])
        for l in late[g]:
            a(l)
        a(tr[3 * g + 1])
        a(tr[3 * g + 2])
    if not direct:
        a(f"v_max3_f32 v{vCHK}, v{vCHK}, v{vM0}, v{vM0+1}")
    for l in tail:
        a(l)
    if opt.get("prio", 1):
        a("s_setprio 1")
    for l in p_phase(cur, (c - 1) & 3, direct):
        a(l)


def main_loop(a, direct, opt):
    tag = "D" if direct else "F"
    a(f".p2align 6\nK2_loop{tag}:")
    if opt.get("drop"):
        a.drop = tuple(opt["drop"].split(","))
    for par in range(2):
        for c in range(4):
            if opt.get("prio", 1):
                a("s_setprio 0")
            step(a, par, c, direct, opt, tag)
        if par == 0:
            a(f"s_cbranch_scc1 K2_drain{tag}")
        else:
            a(f"s_cbranch_scc0 K2_loop{tag}")
    a.drop = ()
    a(f"K2_drain{tag}:")
    a("s_setprio 0")
    if not direct:
        a(f"""
        v_rcp_f32 v{vR}, v{vM0}
        v_rcp_f32 v{vR+1}, v{vM0+1}
        v_max3_f32 v{vCHK}, v{vCHK}, v{vM0}, v{vM0+1}
        """)
    a(accum(3, direct))
    for l in flush(0):
        a(l)
    a("s_waitcnt lgkmcnt(0)")
    for l in flush(1):
        a(l)
    a("s_branch K2_loop_done")
    for par in range(2):
        a(f"K2_fl{tag}{par}:")
        for i in range(2):
            a(f"s_mov_b64 exec, s[{sCH+2*i}:{sCH+2*i+1}]\ns_cbranch_execz K2_fls{tag}{par}{i}")
            if i == 1:
                a("s_waitcnt lgkmcnt(0)")
            for l in flush(i):
                a(l)
            for ct in range(4):
                a(f"v_mov_b32 v{vACC+2*ct+i}, 0")
            a(a_addr(par, i))
            a(f"K2_fls{tag}{par}{i}:")
        a(f"s_mov_b64 exec, -1\ns_branch K2_flr{tag}{par}")
        a(f"K2_ql{tag}{par}:")
        for i in range(2):
            a(f"s_mov_b64 exec, s[{sCH+2*i}:{sCH+2*i+1}]\ns_cbranch_execz K2_qls{tag}{par}{i}")
            for l in q_load(par ^ 1, i):
                a(l)
            a(f"K2_qls{tag}{par}{i}:")
        a(f"s_mov_b64 exec, -1\ns_branch K2_qlr{tag}{par}")


def gen_k2(a, opt):
    XSZ = 0 if opt.get("nox") else N * 128
    ESZ = 0 if opt.get("noe") else E * 32
    t0, t1, t2, t3, t4, t5, t6, t7 = range(vT0, vT0 + 8)
    a(f"""
    s_cmp_ge_u32 s2, 256
    s_cbranch_scc1 K2_end
    s_load_dwordx2 s[{sU+4}:{sU+5}], s[0:1], 80
    s_load_dwordx4 s[{sU}:{sU+3}], s[0:1], 0
    s_load_dwordx2 s[{sU+6}:{sU+7}], s[0:1], 40
    s_load_dwordx4 s[{sU+8}:{sU+11}], s[0:1], 56
    v_lshrrev_b32 v2, 6, v0
    v_and_b32 v{vLANE}, 63, v0
    v_readfirstlane_b32 s{sW}, v2
    s_and_b32 s{sK}, s2, 7
    s_lshl_b32 s{sK}, s{sK}, 5
    s_lshr_b32 s{sT}, s2, 3
    s_add_u32 s{sK}, s{sK}, s{sT}
    s_mov_b32 s{sMODE}, {1 if opt.get('force_general') else 0}
    s_mov_b32 s{sR32}, 0
    s_mov_b32 s{sGRP}, 0
    s_mov_b32 s{sFIRST}, 1
    s_mul_i32 s{sNB}, s{sK}, 625
    s_add_u32 s{sNN}, s{sNB}, 640
    s_add_u32 s{sNB}, s{sNB}, 15
    s_lshr_b32 s{sNB}, s{sNB}, 4
    s_lshr_b32 s{sNN}, s{sNN}, 4
    s_sub_u32 s{sNN}, s{sNN}, s{sNB}
    s_waitcnt lgkmcnt(0)
    """)
    srd(a, sWS, sU + 4, sU + 5, WSZ)
    stamp_setup(a, opt, sU + 4, 1, sW)
    stamp(a, opt, 0)
    a(f"""
    s_mov_b32 s{sX}, s{sU}
    s_and_b32 s{sX+1}, s{sU+1}, 0xffff
    s_mov_b32 s{sX+3}, 0x20000
    s_mov_b32 s{sE}, s{sU+2}
    s_and_b32 s{sE+1}, s{sU+3}, 0xffff
    s_mov_b32 s{sE+3}, 0x20000
    """)
    first_part = len(a.L)
    srd(a, sB1, sU + 6, sU + 7, 256)
    srd(a, sB2, sU + 8, sU + 9, 128)
    srd(a, sO, sU + 10, sU + 11, N * 128)
    a(f"""
    s_movk_i32 s{sC128}, 128
    s_movk_i32 s{sCFC}, 0xfc
    s_movk_i32 s{sC33}, {1 << 14}
    s_movk_i32 s{sCRS}, {RS}
    s_movk_i32 s{sCRA}, {RA}
    s_lshl_b32 s{sMX}, s{sW}, 12
    s_add_u32 s{sMX}, s{sMX}, {XS}
    s_add_u32 s{sMX+1}, s{sMX}, 1024
    s_add_u32 s{sMX+2}, s{sMX}, 2048
    s_add_u32 s{sMX+3}, s{sMX}, 3072
    s_lshl_b32 s{sME}, s{sW}, 11
    s_add_u32 s{sME}, s{sME}, {ES}
    s_add_u32 s{sME+1}, s{sME}, 1024
    """)
    late_setup = a.L[first_part:]
    del a.L[first_part:]

    def off_loads():
        a(f"""
        v_lshrrev_b32 v{t0}, 2, v0
        v_and_b32 v{t1}, 15, v{t0}
        v_and_b32 v{t0}, 0x70, v{t0}
        v_lshl_or_b32 v{t0}, v{t0}, 1, v{t1}            ; cell = 32w + (l>>2)
        s_lshl_b32 s{sT+1}, s{sK}, 2
        v_lshlrev_b32 v{t1}, 10, v{t0}
        s_add_u32 s{sT+1}, s{sT+1}, {OFF}
        s_add_u32 s{sT+2}, s{sT+1}, 16384
        buffer_load_dword v{vOF}, v{t1}, s[{sWS}:{sWS+3}], s{sT+1} offen
        buffer_load_dword v{vOF+1}, v{t1}, s[{sWS}:{sWS+3}], s{sT+2} offen
        """)
    off_loads()
    a.L += late_setup
    a("s_branch K2_batch1\nK2_batch:")
    off_loads()
    a(f"""
K2_batch1:
    s_mov_b32 s{sX+2}, {XSZ}
    s_mov_b32 s{sE+2}, {ESZ}
    v_lshlrev_b32 v{t2}, 4, v{vLANE}
    s_lshl_b32 s{sT}, s{sW}, 10
    s_add_u32 s{sU}, s{sT}, {WF}
    s_add_u32 s{sU+1}, s{sT}, {XS}
    """)
    for r in range(4):
        a(f"""
        s_add_u32 m0, s{sU+1}, {r*8192}
        s_add_u32 s{sU+2}, s{sU}, {r*8192}
        buffer_load_dwordx4 v{t2}, s[{sWS}:{sWS+3}], s{sU+2} offen lds
        """)
    a(f"""
    s_mov_b32 s{sU+3}, {W2L-4096}
    s_cmp_lt_u32 s{sW}, 4
    s_cmov_b32 s{sU+3}, {XS+32768}
    s_add_u32 m0, s{sU+3}, s{sT}
    s_add_u32 s{sU+2}, s{sU}, {32*1024}
    buffer_load_dwordx4 v{t2}, s[{sWS}:{sWS+3}], s{sU+2} offen lds
    s_add_u32 m0, s{sT}, {W2L+4096}
    s_add_u32 s{sU+2}, s{sU}, {40*1024}
    buffer_load_dwordx4 v{t2}, s[{sWS}:{sWS+3}], s{sU+2} offen lds
    s_and_b32 s{sU+3}, s{sT}, 3072
    s_add_u32 m0, s{sU+3}, {W2L+12288}
    s_add_u32 s{sU+2}, s{sU+3}, {WF+48*1024}
    buffer_load_dwordx4 v{t2}, s[{sWS}:{sWS+3}], s{sU+2} offen lds
    v_lshrrev_b32 v{t3}, 4, v0
    v_xor_b32 v{t3}, v{t3}, v0
    v_and_b32 v{t3}, 7, v{t3}
    v_lshrrev_b32 v{t4}, 3, v0
    v_lshlrev_b32 v{t3}, 4, v{t3}
    v_lshl_add_u32 v{t3}, v{t4}, 7, v{t3}
    s_add_u32 m0, s{sT}, {XST}
    s_lshl_b32 s{sU+3}, s{sNB}, 7
    buffer_load_dwordx4 v{t3}, s[{sX}:{sX+3}], s{sU+3} offen lds
    v_and_b32 v{t3}, 31, v{vLANE}
    v_lshrrev_b32 v{t4}, 5, v{vLANE}
    v_lshlrev_b32 v{t5}, 1, v{t3}
    s_and_b32 s{sU+4}, s{sW}, 3
    s_lshl_b32 s{sU+5}, s{sU+4}, 6
    buffer_load_ushort v{vR}, v{t5}, s[{sB1}:{sB1+3}], s{sU+5} offen
    ; ---- counters
    s_cmp_lg_u32 s{sW}, 0
    s_cbranch_scc1 K2_init2
    v_mov_b32 v{vS}, 0
    v_mov_b32 v{vS+1}, 0
    v_lshlrev_b32 v{vS+2}, 2, v{vLANE}
    v_add_u32 v{vS+2}, {HIST}, v{vS+2}
    ds_write_b32 v{vS+2}, v{vS}
    v_lshlrev_b32 v{vS+3}, 3, v{vLANE}
    ds_write_b64 v{vS+3}, {vr(vS,2)} offset:{QOFF+40*RS}
    s_cmp_eq_u32 s{sFIRST}, 0
    s_cbranch_scc1 K2_init2
    ds_write_b32 v{vS+2}, v{vS} offset:{CNTT-HIST}
    ds_write_b32 v{vS+2}, v{vS} offset:{MISC-HIST-192}
K2_init2:
    ; ---- records
    v_and_b32 v{t1}, 3, v{vLANE}
    v_lshlrev_b32 v{t1}, 2, v{t1}                 ; 4q
    v_add_u32 v{t1}, s{sR32}, v{t1}               ; 4q + r32
    s_movk_i32 s{sU+7}, {CH}
    v_mul_u32_u24 v{vOF+6}, s{sU+7}, v{t0}
    v_add_u32 v{vOF+7}, {16*CH}, v{vOF+6}
    s_movk_i32 s{sU+7}, {CHS//4}
    v_mad_u32_u24 v{vOF+4}, v{t0}, s{sU+7}, v{t1}
    v_add_u32 v{vOF+5}, {16*CHS//4}, v{vOF+4}
    v_mov_b32 v{t5}, 0x40000000
    s_mov_b32 s{sU+8}, -1
    s_cmp_eq_u32 s{sMODE}, 0
    s_cbranch_scc1 K2_cnt_ok
    s_lshr_b32 s{sU+7}, s{sW}, 1
    s_cmp_eq_u32 s{sU+7}, s{sGRP}
    s_cselect_b32 s{sU+8}, -1, 0
K2_cnt_ok:
    """)
    stamp(a, opt, 13)
    a("s_waitcnt vmcnt(9)")
    stamp(a, opt, 1)

    def mk(sec, i, u):
        n = 8 * sec + 4 * i + u
        return f"s[{sMK+2*n}:{sMK+2*n+1}]"
    for i in range(2):
        a(f"""
        v_and_b32 v{vOF+2+i}, 0xffff, v{vOF+i}
        v_lshrrev_b32 v{vOF+i}, 16, v{vOF+i}
        v_add_lshl_u32 v{vOF+4+i}, v{vOF+4+i}, v{vOF+2+i}, 2
        v_and_b32 v{vOF+2+i}, s{sU+8}, v{vOF+i}
        v_sub_u32 v{vOF+2+i}, v{vOF+2+i}, v{t1}
        """)
    for sec in range(2):
        for i in range(2):
            a(f"v_cmp_lt_i32 {mk(sec,i,0)}, {16*sec}, v{vOF+2+i}")
    for sec in range(2):
        for i in range(2):
            a(f"v_cndmask_b32 v{vS+2*sec+i}, v{t5}, v{vOF+4+i}, {mk(sec,i,0)}")
    for sec in range(2):
        for i in range(2):
            a(f"buffer_load_dwordx4 {vr(vREC+8*sec+4*i,4)}, v{vS+2*sec+i}, s[{sWS}:{sWS+3}], 0 offen offset:{64*sec}")
    a(f"""
    v_lshlrev_b32 v{t6}, 7, v0
    s_lshr_b32 s{sU+5}, s2, 3
    s_mul_i32 s{sU+5}, s{sU+5}, {313*128}
    s_movk_i32 s{sU+6}, 313
    v_cmp_gt_u32 vcc, s{sU+6}, v0
    v_max_u32 v{vOF}, v{vOF}, v{vOF+1}
    v_lshlrev_b32 v{vCOL4}, 2, v{t3}
    v_cndmask_b32 v{t6}, v{t5}, v{t6}, vcc
    buffer_load_dword v{vR+1}, v{t6}, s[{sX}:{sX+3}], s{sU+5} offen
    s_waitcnt vmcnt(5) lgkmcnt(0)
    """)
    stamp(a, opt, 9)
    a(f"""
    s_barrier
    v_add_u32 v{t2}, {XS}, v{t2}
    """)
    for kb in range(5):
        for ct in range(4):
            f = 4 * kb + ct if kb < 4 else 32 + ct
            a(f"ds_read_b128 {W(kb,ct)}, v{t2} offset:{f*1024}")
    a(f"""
    s_lshl_b32 s{sU+5}, s{sU+4}, 10
    v_add_u32 v{t5}, s{sU+5}, v{t2}
    v_bfe_u32 v{t6}, v{t3}, 1, 3
    v_xor_b32 v{t6}, v{t6}, v{t4}
    v_lshlrev_b32 v{t6}, 4, v{t6}
    v_lshl_add_u32 v{t6}, v{t3}, 7, v{t6}
    s_lshr_b32 s{sU+5}, s{sW}, 2
    s_lshl_b32 s{sU+5}, s{sU+5}, 12
    s_add_u32 s{sU+5}, s{sU+5}, {XST}
    v_add_u32 v{t6}, s{sU+5}, v{t6}
    """)
    for s in range(4):
        a(f"ds_read_b128 a[{aQB+4*s}:{aQB+4*s+3}], v{t5} offset:{(16+4*s)*1024}")
    for s in range(4):
        if s:
            a(f"v_xor_b32 v{t7}, {32*s}, v{t6}")
        a(f"ds_read_b128 a[{aQA+4*s}:{aQA+4*s+3}], v{t7 if s else t6}")
    for sec in range(2):
        for i in range(2):
            for u in range(1, 4):
                a(f"v_cmp_lt_i32 {mk(sec,i,u)}, {16*sec+u}, v{vOF+2+i}")
    a(f"""
    v_mov_b32 v{vOF+1}, {MISC}
    s_cmp_eq_u32 s{sMODE}, 0
    s_cbranch_scc1 K2_fastchk
    ds_max_u32 v{vOF+1}, v{vOF} offset:4
    s_branch K2_chkdone
K2_fastchk:
    v_cmp_lt_u32 vcc, 32, v{vOF}
    s_cbranch_vccz K2_chkdone
    s_and_saveexec_b64 s[{sU+8}:{sU+9}], vcc
    v_mov_b32 v{vOF+1}, {HIST+252}
    v_mov_b32 v{vOF}, 0x100000
    ds_max_u32 v{vOF+1}, v{vOF}
    s_mov_b64 exec, -1
K2_chkdone:
    v_lshlrev_b32 v{vCOL8}, 3, v{t3}
    v_bfe_u32 v{vS}, v{vLANE}, 4, 1               ; (l>>4)&1
    v_lshl_or_b32 v{vS+1}, v{t4}, 2, v{vS}        ; 4*(l>>5)+((l>>4)&1)
    v_and_b32 v{vS+2}, 7, v{vLANE}
    v_xor_b32 v{vXC0}, v{vS+1}, v{vS+2}
    v_lshlrev_b32 v{vXC0}, 4, v{vXC0}
    v_xor_b32 v{vXC1}, 32, v{vXC0}
    v_and_b32 v{vEC}, 1, v{vLANE}
    v_xor_b32 v{vEC}, v{vEC}, v{vS}
    v_lshlrev_b32 v{vEC}, 4, v{vEC}
    ; m = l&31 ; j = 16*((m>>2)&1) + 8*(m&1) + 2*(m>>3) + ((m>>1)&1)
    v_bfe_u32 v{vS}, v{t3}, 2, 1                  ; hm
    v_and_b32 v{vS+1}, 1, v{t3}                   ; xy
    v_lshrrev_b32 v{vS+2}, 3, v{t3}               ; m>>3
    v_bfe_u32 v{vS+3}, v{t3}, 1, 1
    v_lshl_add_u32 v{vS+2}, v{vS+2}, 1, v{vS+3}   ; p
    v_lshl_add_u32 v{vS+3}, v{vS}, 1, v{vS+1}     ; seg
    v_lshl_add_u32 v{vS+3}, v{vS+3}, 3, v{vS+2}   ; j
    v_xor_b32 v{vAE}, v{t4}, v{vS+1}
    v_lshlrev_b32 v{vAE}, 4, v{vAE}
    v_lshl_add_u32 v{vAE}, v{vS+3}, 5, v{vAE}
    v_add_u32 v{vAE}, s{sME}, v{vAE}
    v_and_b32 v{vEO}, 3, v{vS+3}
    v_lshrrev_b32 v{vS+3}, 2, v{vS+3}
    v_lshl_add_u32 v{vS+3}, v{vEO}, 3, v{vS+3}
    v_lshlrev_b32 v{vS+3}, 7, v{vS+3}
    v_add_u32 v{vS+3}, s{sMX}, v{vS+3}
    v_and_b32 v{vEO}, 7, v{t3}
    v_xor_b32 v{vEO}, v{vEO}, v{t4}
    v_lshl_add_u32 v{vAX}, v{vEO}, 4, v{vS+3}
    v_xor_b32 v{vAX+1}, 32, v{vAX}
    v_xor_b32 v{vAX+2}, 64, v{vAX}
    v_xor_b32 v{vAX+3}, 0x60, v{vAX}
    v_cmp_eq_u32 vcc, v{vS}, v{t4}
    v_mov_b32 v{vAQ}, 0x3f803f80
    v_bfe_u32 v{vPS}, v{vLANE}, 3, 1
    v_cndmask_b32 v{vAQ}, 0, v{vAQ}, vcc
    v_cmp_eq_u32 vcc, 1, v{vS+1}
    v_lshlrev_b32 v{vPS}, 4, v{vPS}
    v_bfe_u32 v{vPE}, v{vLANE}, 1, 3
    v_cndmask_b32 v{vAQ+1}, 0, v{vAQ}, vcc
    v_cndmask_b32 v{vAQ}, v{vAQ}, 0, vcc
    v_lshlrev_b32 v{vPE}, 2, v{vPE}
    v_mov_b32 v{t5}, 4
    v_mov_b32 v{t2}, {HIST}
    """)
    stamp(a, opt, 10)
    a("s_waitcnt vmcnt(1)")
    stamp(a, opt, 2)

    def slot1(sec, i, u):
        n = 8 * sec + 4 * i + u
        a(f"""
        v_and_b32_sdwa v{vHA+n}, v{vREC+n}, s{sCFC} dst_sel:DWORD dst_unused:UNUSED_PAD src0_sel:BYTE_3 src1_sel:DWORD
        v_add_u32 v{t0}, v{vHA+n}, v{t2}
        ds_add_rtn_u32 v{vRK+n}, v{t0}, v{t5}
        """)

    def slot1b(sec, i, u):
        n = 8 * sec + 4 * i + u
        a(f"""
        v_and_b32 v{vEID+n}, 0xfff, v{vREC+n}
        v_bfe_u32 v{vREC+n}, v{vREC+n}, 12, 14
        v_add_u32 v{vEID+n}, v{vEID+n}, v{vOF+6+i}
        v_mad_u32_u24 v{vREC+n}, v{vHA+n}, s{sC33}, v{vREC+n}
        """)
    for i in range(2):
        for u in range(4):
            a(f"s_mov_b64 exec, {mk(0,i,u)}")
            slot1(0, i, u)
    for i in range(2):
        for u in range(4):
            a(f"s_mov_b64 exec, {mk(1,i,u)}\ns_cbranch_execz K2_s1skip{i}")
            slot1(1, i, u)
            slot1b(1, i, u)
        a(f"K2_s1skip{i}:")
    a(f"""
    s_mov_b64 exec, -1
    v_lshlrev_b32 v{vS}, 2, v{vLANE}
    v_add_u32 v{vS}, {HIST}, v{vS}
    s_waitcnt lgkmcnt(0)
    """)
    stamp(a, opt, 11)
    a(f"""
    s_barrier
    ds_read_b32 v{vS+1}, v{vS}
    """)
    for i in range(2):
        for u in range(4):
            slot1b(0, i, u)
    a(f"""
    s_waitcnt lgkmcnt(0)
    v_add_u32 v{vS+2}, 28, v{vS+1}
    v_and_b32 v{vS+2}, -32, v{vS+2}
    v_mov_b32 v{vS+3}, v{vS+2}
    """)
    scan64(a, vS + 3)
    a(f"""
    v_sub_u32 v{vEO}, v{vS+2}, v{vS+1}
    v_readlane_b32 s{sU+9}, v{vS+3}, 63
    v_sub_u32 v{vS+3}, v{vS+3}, v{vS+2}
    v_add_u32 v{vS+3}, {SRCL}, v{vS+3}
    s_cmp_gt_u32 s{sU+9}, {CAPP*4}
    s_cbranch_scc1 K2_togeneral
    """)
    for n in range(8):
        a(f"ds_bpermute_b32 v{vHA+n}, v{vHA+n}, v{vS+3}")
    a(f"""
    s_add_u32 s{sU+7}, s{sU+9}, 127
    s_lshr_b32 s{sU+7}, s{sU+7}, 7                ; NT
    v_mov_b32 v{t0}, {hex(DUMMY_E)}
    s_lshl_b32 s{sU+8}, s{sW}, 2
    v_lshl_or_b32 v{t1}, v{vLANE}, 16, 1
    v_add3_u32 v{t6}, v{vS+3}, v{vS+1}, s{sU+8}
    v_add_u32 v{t1}, 0xfffe, v{t1}
    v_cmp_lt_u32 vcc, s{sU+8}, v{vEO}
    s_cmp_lg_u32 s{sW}, 7
    s_cbranch_scc1 K2_pad
    s_lshl_b32 s{sU+8}, s{sU+7}, 7
    s_add_u32 s{sU+10}, s{sU+9}, {SRCL}
    s_sub_u32 s{sU+8}, s{sU+8}, s{sU+9}
    v_lshlrev_b32 v{t6}, 2, v{vLANE}
    v_mov_b32 v{t1}, {hex(DUMMY_S)}
    v_cmp_gt_u32 vcc, s{sU+8}, v{t6}
    v_add_u32 v{t6}, s{sU+10}, v{t6}
K2_pad:
    v_cvt_f32_u32 v{vEO}, v{vEO}
    v_mul_f32 v{vEO}, 0xbe800000, v{vEO}
    """)
    for n in range(8):
        a(f"s_waitcnt lgkmcnt({7-n})\nv_add_u32 v{vRK+n}, v{vRK+n}, v{vHA+n}")
    a(f"""
    s_mov_b64 exec, vcc
    ds_write2st64_b32 v{t6}, v{t1}, v{t0} offset0:0 offset1:{(ELST-SRCL)//256}
    """)
    for n in range(8):
        a(f"s_mov_b64 exec, s[{sMK+2*n}:{sMK+2*n+1}]")
        a(f"ds_write2st64_b32 v{vRK+n}, v{vREC+n}, v{vEID+n} offset0:0 offset1:{(ELST-SRCL)//256}")
    for i in range(2):
        a(f"s_cmp_eq_u64 {mk(1,i,0)}, 0\ns_cbranch_scc1 K2_s2skip{i}\ns_mov_b64 exec, -1")
        for u in range(4):
            n = 8 + 4 * i + u
            a(f"ds_bpermute_b32 v{vHA+n}, v{vHA+n}, v{vS+3}")
        a("s_waitcnt lgkmcnt(0)")
        for u in range(4):
            n = 8 + 4 * i + u
            a(f"""
            s_mov_b64 exec, {mk(1,i,u)}
            v_add_u32 v{vRK+n}, v{vRK+n}, v{vHA+n}
            ds_write2st64_b32 v{vRK+n}, v{vREC+n}, v{vEID+n} offset0:0 offset1:{(ELST-SRCL)//256}
            """)
        a(f"K2_s2skip{i}:")
    a(f"""
    s_mov_b64 exec, -1
    ds_write_b32 v{vS}, v{vEO} offset:{NPAD-HIST}
    s_cmp_lg_u32 s{sW}, 0
    s_cbranch_scc1 K2_nocnt
    ds_add_u32 v{vS}, v{vS+1} offset:{CNTT-HIST}
K2_nocnt:
    s_lshr_b32 s{sU+8}, s{sU+7}, 3
    s_and_b32 s{sU+7}, s{sU+7}, 7
    s_mul_i32 s{sU+10}, s{sU+8}, s{sW}
    s_min_u32 s{sU+11}, s{sW}, s{sU+7}
    s_add_u32 s{sU+10}, s{sU+10}, s{sU+11}
    s_cmp_lt_u32 s{sW}, s{sU+7}
    s_addc_u32 s{sNT}, s{sU+8}, 0
    s_lshl_b32 s{sU+10}, s{sU+10}, 7
    s_add_u32 s{sU+10}, s{sU+10}, {SRCL}
    s_lshl_b32 s{sU+11}, s{sNT}, 5
    v_lshrrev_b32 v{t0}, 4, v{vLANE}
    v_mul_u32_u24 v{t0}, s{sU+11}, v{t0}
    v_add3_u32 v{vPS}, v{vPS}, v{t0}, s{sU+10}
    v_add3_u32 v{vPE}, v{vPE}, v{t0}, s{sU+10}
    s_waitcnt lgkmcnt(0)
    s_barrier
    """)
    stamp(a, opt, 3)
    a(f"""
    ds_read_b128 {vr(vS,4)}, v{vPS}
    ds_read_b32 v{vEO}, v{vPE} offset:{ELST-SRCL}
    ds_read_b32 v{t0}, v{vPE} offset:{ELST-SRCL+32}
    """)
    for l in clamp(sX, XSZ, 0) + clamp(sE, ESZ, 0):
        a(l)
    for s in range(4):
        c = "0" if s == 0 else vr(vQZ, 16)
        a(f"v_mfma_f32_32x32x16_bf16 {vr(vQZ,16)}, a[{aQA+4*s}:{aQA+4*s+3}], a[{aQB+4*s}:{aQB+4*s+3}], {c}")
    a("s_waitcnt lgkmcnt(1)")
    for l in n_update(0):
        a(l)
    a(e_off())
    for i in range(4):
        a(dma_x(i)[0] + "\ns_nop 0\n" + dma_x(i)[1])
    a(dma_e(0, opt)[0] + "\ns_nop 0\n" + dma_e(0, opt)[1])
    a(f"""
    s_waitcnt lgkmcnt(0)
    v_lshl_add_u32 v{vEO}, v{t0}, 5, v{vEC}
    """)
    for l in clamp(sE, ESZ, 1):
        a(l)
    a(dma_e(1, opt)[0] + "\ns_nop 0\n" + dma_e(1, opt)[1])
    a(f"""
    ds_read_b128 {vr(vS,4)}, v{vPS} offset:32
    ds_read_b32 v{vEO}, v{vPE} offset:{ELST-SRCL+64}
    s_lshr_b32 s{sU+5}, s{sW}, 2
    s_lshl_b32 s{sU+7}, s{sU+5}, 7
    s_add_u32 s{sU+7}, s{sU+7}, {NPAD}
    v_lshl_add_u32 v{t0}, v{t4}, 4, s{sU+7}
    """)
    for g in range(4):
        a(f"ds_read_b128 {vr(vACC+4*g,4)}, v{t0} offset:{32*g}")
    a(f"""
    s_mul_i32 s{sU+7}, s{sU+5}, {32*RS}
    s_lshl_b32 s{sU+8}, s{sU+4}, 7
    s_add_u32 s{sU+7}, s{sU+7}, s{sU+8}
    s_movk_i32 s{sU+8}, {4*RS}
    v_mad_u32_u24 v{t5}, v{t4}, s{sU+8}, v{vCOL4}
    v_add_u32 v{t5}, s{sU+7}, v{t5}
    s_mul_i32 s{sU+7}, s{sU+5}, {32*RA}
    s_lshl_b32 s{sU+8}, s{sU+4}, 8
    s_add_u32 s{sU+7}, s{sU+7}, s{sU+8}
    s_movk_i32 s{sU+8}, {4*RA}
    v_mad_u32_u24 v{t6}, v{t4}, s{sU+8}, v{vCOL8}
    v_add_u32 v{t6}, s{sU+7}, v{t6}
    v_lshlrev_b32 v{vR}, 16, v{vR}
    v_mul_f32 v{vR}, {hex(LOG2E_NEG)}, v{vR}
    s_mov_b32 s{sU+6}, {hex(LOG2E_NEG)}
    """)
    qh, ql = vD[0], vA

    def qvals(rng, tag):
        for r in rng:
            a(f"v_fma_f32 v{vQZ+r}, v{vQZ+r}, s{sU+6}, v{vR}")
        for r in rng:
            a(f"v_exp_f32 v{vE+r}, v{vQZ+r}")
        for r in rng:
            a(f"v_cvt_pk_bf16_f32 v{qh+r}, v{vQZ+r}, v{vQZ+r}")
        for r in rng:
            a(f"v_add_f32 v{vE+r}, 1.0, v{vE+r}")
        for r in rng:
            a(f"v_and_b32 v{qh+r}, 0xffff0000, v{qh+r}")
        for r in rng:
            a(f"v_rcp_f32 v{vE+r}, v{vE+r}")
        for r in rng:
            a(f"v_sub_f32 v{ql+r}, v{vQZ+r}, v{qh+r}")
        for r in rng:
            a(f"v_cvt_pk_bf16_f32 v{qh+r}, v{qh+r}, v{ql+r}")
        for r in rng:
            a(f"ds_write_b32 v{t5}, v{qh+r} offset:{QOFF+(8*(r>>2)+(r&3))*RS}")
        for r in rng:
            a(f"v_mul_f32 v{vE+r}, v{vE+r}, v{vQZ+r}")
        a(f"s_waitcnt lgkmcnt({len(rng)})")
        for r in rng:
            a(f"v_mul_legacy_f32 v{vE+r}, v{vE+r}, v{vACC+r}")
        a(f"s_waitcnt lgkmcnt(0)")
        for r in rng:
            a(f"v_cvt_f64_f32 {vr(vA+2*r,2)}, v{vE+r}")
        a(f"s_cmp_eq_u32 s{sFIRST}, 0\ns_cbranch_scc1 K2_qadd{tag}")
        for r in rng:
            a(f"ds_write_b64 v{t6}, {vr(vA+2*r,2)} offset:{AGG+(8*(r>>2)+(r&3))*RA}")
        a(f"s_branch K2_qend{tag}\nK2_qadd{tag}:")
        for r in rng:
            a(f"ds_add_f64 v{t6}, {vr(vA+2*r,2)} offset:{AGG+(8*(r>>2)+(r&3))*RA}")
        a(f"K2_qend{tag}:")
    a(f"s_cmp_ge_u32 s{sW}, 4\ns_cbranch_scc1 K2_qlight")
    qvals(range(12), "a")
    a("s_waitcnt lgkmcnt(0)")
    qvals(range(12, 16), "b")
    a("s_branch K2_qdone\nK2_qlight:")
    qvals(range(4), "c")
    a("K2_qdone:")
    for l in n_update(1):
        a(l)
    a(e_off())
    a(f"""
    {a_addr(0,0)}
    {a_addr(0,1)}
    v_mov_b64 {vr(vT,2)}, 0
    v_mov_b64 {vr(vR,2)}, 0
    v_mov_b32 v{vM0}, 1.0
    v_mov_b32 v{vM0+1}, 1.0
    v_mov_b32 v{vCHK}, 1.0
    v_mov_b64 {vr(vACC,2)}, 0
    v_mov_b64 {vr(vACC+2,2)}, 0
    v_mov_b64 {vr(vACC+4,2)}, 0
    v_mov_b64 {vr(vACC+6,2)}, 0
    s_mov_b64 s[{sCH}:{sCH+1}], 0
    s_mov_b64 s[{sCH+2}:{sCH+3}], 0
    s_waitcnt lgkmcnt(0)
    s_barrier
    s_cmp_eq_u32 s{sNT}, 0
    s_cbranch_scc1 K2_loop_done
    """)
    stamp(a, opt, 12)
    for l in q_load(0, 0) + q_load(0, 1) + clamp(sX, XSZ, 1) + clamp(sE, ESZ, 2):
        a(l)
    a("s_waitcnt vmcnt(1)")
    stamp(a, opt, 4)
    stamp(a, opt, 7, clk=True)
    for l in a_reads(0):
        a(l)
    a("s_waitcnt lgkmcnt(0)")
    mf = mfmas(vD[0], 0)
    for i in range(4):
        a(dma_x(i)[0] + "\n" + mf[i] + "\n" + dma_x(i)[1])
    a(dma_e(0, opt)[0] + "\n" + mf[4] + "\n" + dma_e(0, opt)[1])
    a(mf[5])
    a(f"""
    s_nop 7
    s_cmp_eq_u32 s{sMODE}, 0
    s_cbranch_scc0 K2_loopD
    """)
    main_loop(a, False, opt)
    main_loop(a, True, opt)
    a(f"""
K2_loop_done:
    s_mov_b32 s{sU}, 0x7b800000
    v_cmp_le_f32 vcc, s{sU}, v{vCHK}
    v_mov_b32 v{t0}, {MISC}
    v_mov_b32 v{t1}, 1
    s_and_saveexec_b64 s[{sU+8}:{sU+9}], vcc
    s_cbranch_execz K2_noflag
    ds_write_b32 v{t0}, v{t1}
K2_noflag:
    s_mov_b64 exec, -1
    v_and_b32 v{t2}, 15, v{vLANE}
    v_lshrrev_b32 v{t3}, 4, v{vLANE}
    s_and_b32 s{sU+1}, s{sW}, 1
    s_lshr_b32 s{sU+2}, s{sW}, 1
    s_lshl_b32 s{sU+3}, s{sU+1}, 6
    v_lshlrev_b32 v{t4}, 3, v{t3}
    buffer_load_dwordx2 {vr(vB2,2)}, v{t4}, s[{sB2}:{sB2+3}], s{sU+3} offen
    buffer_load_dwordx2 {vr(vB2+2,2)}, v{t4}, s[{sB2}:{sB2+3}], s{sU+3} offen offset:32
    s_lshl_b32 s{sU+3}, s{sU+1}, 13
    s_add_u32 s{sU+3}, s{sU+3}, {W2L}
    v_lshl_add_u32 v{t5}, v{vLANE}, 4, s{sU+3}
    """)
    for o in range(2):
        for s in range(4):
            a(f"ds_read_b128 {vr(vE-32+16*o+4*s,4)}, v{t5} offset:{(4*o+s)*1024}")
    stamp(a, opt, 8, clk=True)
    stamp(a, opt, 5)
    a(f"""
    s_waitcnt vmcnt(0) lgkmcnt(0)
    s_barrier
    s_cmp_eq_u32 s{sMODE}, 0
    s_cbranch_scc1 K2_epi
    ds_read_b32 v{t1}, v{t0} offset:4
    s_add_u32 s{sGRP}, s{sGRP}, 1
    s_mov_b32 s{sFIRST}, 0
    s_waitcnt lgkmcnt(0)
    v_readfirstlane_b32 s{sU+4}, v{t1}
    s_cmp_lt_u32 s{sGRP}, 4
    s_cbranch_scc1 K2_rebatch
    s_mov_b32 s{sGRP}, 0
    s_add_u32 s{sR32}, s{sR32}, 32
    s_cmp_lt_u32 s{sR32}, s{sU+4}
    s_cbranch_scc1 K2_rebatch
K2_epi:
    s_cmp_ge_u32 s{sW}, 6
    s_cbranch_scc1 K2_epi_done
    s_lshl_b32 s{sU+4}, s{sU+2}, 4
    v_add_u32 v{t2}, s{sU+4}, v{t2}
    v_lshlrev_b32 v{t5}, 6, v{t3}
    v_mad_u32_u24 v{t5}, v{t2}, s{sCRA}, v{t5}
    v_lshlrev_b32 v{t4}, 2, v{t2}
    v_add_u32 v{t4}, {CNTT}, v{t4}
    ds_read_b32 v{t1}, v{t4}
    """)
    vG = [24, 40, 88, 104]
    for s in range(4):
        if s == 3:
            a("s_waitcnt lgkmcnt(8)")
        for u in range(4):
            a(f"ds_read_b128 {vr(vG[s]+4*u,4)}, v{t5} offset:{AGG+256*s+16*u}")
    a(f"""
    v_lshlrev_b32 v{t4}, 3, v{t3}
    v_lshl_add_u32 v{t4}, v{t2}, 7, v{t4}
    s_lshl_b32 s{sU+5}, s{sNB}, 7
    s_lshl_b32 s{sU+6}, s{sU+1}, 6
    s_add_u32 s{sU+5}, s{sU+5}, s{sU+6}
    v_lshlrev_b32 v2, 16, v{vB2}
    v_and_b32 v3, 0xffff0000, v{vB2}
    v_lshlrev_b32 v4, 16, v{vB2+1}
    v_and_b32 v5, 0xffff0000, v{vB2+1}
    v_lshlrev_b32 v6, 16, v{vB2+2}
    v_and_b32 v7, 0xffff0000, v{vB2+2}
    v_lshlrev_b32 v8, 16, v{vB2+3}
    v_and_b32 v9, 0xffff0000, v{vB2+3}
    """)
    for s in range(4):
        a(f"s_waitcnt lgkmcnt({12-4*s})")
        for j in range(8):
            a(f"v_cvt_f32_f64 v{vG[s]+j}, {vr(vG[s]+2*j,2)}")
        for j in range(4):
            a(f"v_cvt_pk_bf16_f32 v{vG[s]+j}, v{vG[s]+2*j}, v{vG[s]+2*j+1}")
    a(f"""
    v_cvt_f32_u32 v{t1}, v{t1}
    v_mul_f32 v{t1}, 0.5, v{t1}
    v_mul_f32 v{t1}, 0.5, v{t1}
    """)
    for s in range(4):
        for o in range(2):
            c = "0" if s == 0 else vr(12 + 4 * o, 4)
            a(f"v_mfma_f32_16x16x32_bf16 {vr(12+4*o,4)}, {vr(vE-32+16*o+4*s,4)}, {vr(vG[s],4)}, {c}")
    for j in range(8):
        a(f"v_mul_f32 v{2+j}, v{t1}, v{2+j}")
    a(f"""
    s_mov_b32 s{sU+6}, {hex(LN2_NEG)}
    v_cmp_gt_u32 vcc, s{sNN}, v{t2}
    s_nop 0
    s_and_saveexec_b64 s[{sU+8}:{sU+9}], vcc
    s_cbranch_execz K2_epi_done
    """)
    for j in range(8):
        a(f"v_fma_f32 v{2+j}, v{12+j}, s{sU+6}, v{2+j}")
    for j in range(4):
        a(f"v_cvt_pk_bf16_f32 v{24+j}, v{2+2*j}, v{3+2*j}")
    a(f"""
    buffer_store_dwordx2 v[24:25], v{t4}, s[{sO}:{sO+3}], s{sU+5} offen
    buffer_store_dwordx2 v[26:27], v{t4}, s[{sO}:{sO+3}], s{sU+5} offen offset:32
    v_sub_f32 v2, v2, v2
    """)
    for j in range(1, 8):
        a(f"v_fma_f32 v2, v{2+j}, 0, v2")
    a(f"""
    v_cmp_u_f32 vcc, v2, v2
    v_mov_b32 v{t1}, 1
    s_and_b64 exec, exec, vcc
    s_cbranch_execz K2_epi_done
    ds_write_b32 v{t0}, v{t1}
K2_epi_done:
    s_mov_b64 exec, -1
    """)
    stamp(a, opt, 6)
    stamp_flush(a, opt)
    a(f"""
    s_cmp_lg_u32 s{sMODE}, 0
    s_cbranch_scc1 K2_end
    s_waitcnt lgkmcnt(0)
    s_barrier
    ds_read_b32 v{t1}, v{t0}
    s_waitcnt lgkmcnt(0)
    v_readfirstlane_b32 s{sU+4}, v{t1}
    s_cmp_eq_u32 s{sU+4}, 0
    s_cbranch_scc1 K2_end
K2_togeneral:
    s_mov_b32 s{sMODE}, 1
    s_mov_b32 s{sR32}, 0
    s_mov_b32 s{sGRP}, 0
    s_mov_b32 s{sFIRST}, 1
K2_rebatch:
    s_waitcnt vmcnt(0) lgkmcnt(0)
    s_barrier
    s_branch K2_batch
K2_end:
    s_endpgm
    """)


HDR = """; Edge-featured MPNN: K1 buckets the edges by destination range, K2 sorts each bucket by
; @launch kernel=mpnn_bucket_kernel grid=(256,1,1) block=(704,1,1) lds=12288
; @launch kernel=mpnn_edge_kernel grid=(256,1,1) block=(512,1,1) lds={lds2}
.amdgcn_target "amdgcn-amd-amdhsa--gfx950"
.text
"""


def kd(name, vgpr, sgpr, accum):
    return f""".amdhsa_kernel {name}
  .amdhsa_next_free_vgpr {vgpr}
  .amdhsa_next_free_sgpr {sgpr}
  .amdhsa_accum_offset {accum}
  .amdhsa_group_segment_fixed_size 0
  .amdhsa_kernarg_size 88
  .amdhsa_user_sgpr_count 2
  .amdhsa_user_sgpr_kernarg_segment_ptr 1
  .amdhsa_system_sgpr_workgroup_id_x 1
.end_amdhsa_kernel
"""


def generate(opt=None):
    opt = opt or {}
    out = HDR.format(lds2=LDS2)
    for name, fn in (("mpnn_bucket_kernel", gen_k1), ("mpnn_edge_kernel", gen_k2)):
        a = Asm()
        fn(a, opt)
        out += f".globl {name}\n.p2align 8\n.type {name},@function\n{name}:\n" + a.text()
    out += '.section .rodata,"a"\n.p2align 6\n'
    st = opt.get("stamp")
    out += kd("mpnn_bucket_kernel", 144 if st else 32, 102 if st else 40, 144 if st else 32)
    out += ".p2align 6\n"
    out += kd("mpnn_edge_kernel", 256, 102, 144)
    return out


if __name__ == "__main__":
    opt = {}
    for arg in sys.argv[2:]:
        k, v = arg.split("=")
        opt[k] = int(v) if v.lstrip("-").isdigit() else v
    open(sys.argv[1], "w").write(generate(opt))
```
